```python
import torch

def _softmax(x, axis=-1):
    return torch.softmax(x, dim=axis)

def _gelu(x):
    return torch.nn.functional.gelu(x, approximate='tanh')

def _silu(x):
    return torch.nn.functional.silu(x)

def _sigmoid(x):
    return torch.sigmoid(x)

def _layernorm(x, axis=-1, eps=1e-05):
    m = x.mean(dim=axis, keepdim=True)
    v = x.var(dim=axis, keepdim=True, unbiased=False)
    return (x - m) / torch.sqrt(v + eps)

def _scatter_add(tgt, idx, src, axis=0):
    return tgt.clone().index_add_(axis, idx, src)

def _segment_sum(src, seg, n):
    out = torch.zeros((n,) + src.shape[1:], dtype=src.dtype)
    return out.index_add_(0, seg, src)

def _pad(x, pw):
    flat = tuple((v for pair in reversed(pw) for v in pair))
    return torch.nn.functional.pad(x, flat)
kernel_name = 'gated_mix__linear_attn_block__mixer_gmlp__prompt'

def setup_inputs():

    _w = lambda a: (lambda t: t.to(torch.bfloat16) if t.is_floating_point() else t)(torch.as_tensor(a))

    def _A_setup():
        B, S, D = (1, 2048, 640)
        return {'x': _w((lambda *s: torch.randn(*s, dtype=torch.bfloat16) * 0.05)(B, S, D)), 'wqkv': _w((lambda *s: torch.randn(*s, dtype=torch.bfloat16) * 1.6)(D, 3 * D)), 'wo': _w((lambda *s: torch.randn(*s, dtype=torch.bfloat16) * 0.2)(D, D))}
    _A_in = _A_setup()

    def _B_setup():
        B, S, D, F = (1, 2048, 640, 1728)
        Fh = F // 2
        return {'x': _w((lambda *s: torch.randn(*s, dtype=torch.bfloat16) * 0.05)(B, S, D)), 'w_in': _w((lambda *s: torch.randn(*s, dtype=torch.bfloat16) * 0.4)(D, 2 * Fh)), 'w_sp': _w(0.01 * (lambda *s: torch.randn(*s, dtype=torch.bfloat16) * 0.4)(S, S)), 'b_sp': _w(1.0 + 0.01 * (lambda *s: torch.randn(*s, dtype=torch.bfloat16) * 0.05)(S)), 'w_out': _w((lambda *s: torch.randn(*s, dtype=torch.bfloat16) * 0.05)(Fh, D))}
    _B_in = _B_setup()
    return {'A_x': _A_in['x'], 'A_wqkv': _A_in['wqkv'], 'A_wo': _A_in['wo'], 'B_x': _B_in['x'], 'B_w_in': _B_in['w_in'], 'B_w_sp': _B_in['w_sp'], 'B_b_sp': _B_in['b_sp'], 'B_w_out': _B_in['w_out'], 'gate_w': _w((lambda *s: torch.randn(*s, dtype=torch.bfloat16) * 0.05)(640) * 16.0)}

def reference(A_x, A_wqkv, A_wo, B_x, B_w_in, B_w_sp, B_b_sp, B_w_out, gate_w):

    def _A_ref(x, wqkv, wo):
        B, S, D = x.shape
        H = 32
        Dh = D // H
        qkv = (lambda x, *d: x.permute(*d))((x @ wqkv).reshape(B, S, 3, H, Dh), 2, 0, 3, 1, 4)
        q, k, v = (qkv[0], qkv[1], qkv[2])
        phi = lambda t: torch.where(t > 0, t + 1, torch.exp(t)) + 1e-06
        pq, pk = (phi(q), phi(k))
        kv = torch.einsum('bhsd,bhse->bhde', pk, v)
        z = torch.einsum('bhsd->bhd', pk)
        num = torch.einsum('bhqd,bhde->bhqe', pq, kv)
        den = torch.einsum('bhqd,bhd->bhq', pq, z)[..., None] + 1e-06
        o = num / den
        return (lambda x, *d: x.permute(*d))(o, 0, 2, 1, 3).reshape(B, S, D) @ wo

    def _B_ref(x, w_in, w_sp, b_sp, w_out):
        B, S, D = x.shape
        F = w_in.shape[-1]
        Fh = F // 2
        z = _gelu(torch.einsum('bsd,df->bsf', x, w_in))
        z1 = z[..., :Fh].clone()
        z2 = _layernorm(z[..., Fh:], axis=-1)
        g = torch.einsum('ts,bsf->btf', w_sp, z2) + b_sp[None, :, None]
        return torch.einsum('bsf,fd->bsd', z1 * g, w_out)
    x = A_x
    g = _sigmoid((x * gate_w).sum(-1, keepdims=True))
    a = _A_ref(x, A_wqkv, A_wo)
    b = _B_ref(x, B_w_in, B_w_sp, B_b_sp, B_w_out)
    return g * a + (1 - g) * b
```

```python
import re

TRANS = ("v_exp_f32", "v_rcp_f32", "v_rsq_f32", "v_log_f32", "v_sqrt_f32")
NO_DST_S = ("s_cmp", "s_waitcnt", "s_barrier", "s_branch", "s_cbranch", "s_nop", "s_sleep", "s_setprio", "s_endpgm", "s_bitcmp")
REG_RE = re.compile(r"^-?\|?(?:abs\()?([vas])(?:(\d+)|\[(\d+):(\d+)\])\)?\|?$")


def regs_of(tok):
    tok = tok.strip()
    if tok in ("vcc", "vcc_lo", "vcc_hi"):
        return [("s", "vcc")]
    if tok in ("exec", "exec_lo", "exec_hi"):
        return [("s", "exec")]
    if tok == "m0":
        return [("s", "m0")]
    m = REG_RE.match(tok)
    if not m:
        return []
    k = m.group(1)
    if m.group(2) is not None:
        return [(k, int(m.group(2)))]
    return [(k, i) for i in range(int(m.group(3)), int(m.group(4)) + 1)]


class I:
    __slots__ = ("text", "op", "kind", "w", "r", "srcc", "ab", "tgt", "cost", "wide_store", "data")

    def __init__(self, text, kind=None, tgt=None):
        self.text = text
        self.tgt = tgt
        self.w, self.r, self.srcc, self.ab, self.data = set(), set(), set(), set(), set()
        self.wide_store = False
        if kind is not None:
            self.kind, self.op, self.cost = kind, kind, 1
            return
        parts = text.split(None, 1)
        op = self.op = parts[0]
        rest = parts[1] if len(parts) > 1 else ""
        ops = [t.strip() for t in rest.split(",")] if rest else []
        mods = ""
        if ops:
            last = ops[-1].split(None, 1)
            ops[-1] = last[0]
            mods = last[1] if len(last) > 1 else ""
        R = [regs_of(t) for t in ops]
        flat = lambda ls: {x for l in ls for x in l}
        self.cost = 1
        if op.startswith("v_mfma"):
            self.kind = "mfma32" if "32x32" in op else "mfma16"
            self.w = set(R[0]); self.ab = flat(R[1:3]); self.srcc = set(R[3]); self.r = self.ab | self.srcc
            self.cost = 2
        elif op.startswith("v_"):
            base = re.sub(r"_e(32|64)$|_dpp$", "", op)
            self.kind = "trans" if base in TRANS else "valu"
            if self.kind == "trans":
                self.cost = 2
            self.w = set(R[0]); self.r = flat(R[1:])
            if "permlane" in op:
                self.w = flat(R[:2]); self.r = flat(R[:2])
            if base.startswith(("v_fmac", "v_dot2c", "v_pk_fmac")) or op.endswith("_dpp"):
                self.r |= set(R[0])
            if base.startswith("v_cndmask") and len(ops) == 3:
                self.r.add(("s", "vcc"))
        elif op.startswith("ds_read"):
            self.kind = "ds_r"; self.w = set(R[0]); self.r = flat(R[1:])
        elif op.startswith("ds_write"):
            self.kind = "ds_w"; self.r = flat(R)
        elif op.startswith(("buffer_load", "global_load")):
            if re.search(r"\blds\b", mods):
                self.kind = "vm_dma"; self.r = flat(R) | {("s", "m0")}
            else:
                self.kind = "vm_ld"; self.w = set(R[0]); self.r = flat(R[1:])
        elif op.startswith(("buffer_store", "buffer_atomic")):
            self.kind = "vm_st"; self.r = flat(R); self.data = set(R[0])
            self.wide_store = op.endswith(("x3", "x4"))
        elif op.startswith(("s_load", "s_memtime", "s_memrealtime")):
            self.kind = "smem"; self.w = set(R[0]); self.r = flat(R[1:])
        elif op.startswith(NO_DST_S):
            self.kind = "barrier" if op == "s_barrier" else ("branch" if "branch" in op else "sopp")
            self.r = flat(R)
        elif op.startswith("s_"):
            self.kind = "salu"; self.w = set(R[0]); self.r = flat(R[1:])
        else:
            raise ValueError("unknown instruction: " + text)

    def __repr__(self):
        return self.text


class S(list):
    def __call__(self, text):
        last = None
        for line in text.strip().split("\n"):
            line = line.split(";")[0].strip()
            if not line:
                continue
            if line.endswith(":"):
                last = I(line, kind="label")
            else:
                last = I(line)
            self.append(last)
        return last

    def wait(self, *targets):
        self.append(I("wait", kind="wait", tgt=[t for t in targets if t is not None]))

    def wait_all(self, vm=True, lg=True):
        self.append(I("waitall", kind="waitall", tgt=(vm, lg)))

    def mark(self, name):
        self.append(I(name, kind="mark"))

    def glue(self):
        self.append(I("glue", kind="glue"))


def is_vm(i):
    return i.kind in ("vm_ld", "vm_st", "vm_dma")


def is_lg(i):
    return i.kind in ("ds_r", "ds_w")


def interleave(main, filler, slots_per_gap, start=0, anchor=("mfma32", "mfma16"), stop=None):
    out = S()
    f = list(filler)
    pos = 0
    n = 0
    credit = 0.0
    for ins in main:
        out.append(ins)
        if ins.kind in anchor:
            if n >= start and (stop is None or n < stop):
                credit += slots_per_gap
                while pos < len(f):
                    c = 0 if f[pos].kind in ("mark", "glue", "label") else f[pos].cost
                    glued = pos > 0 and f[pos - 1].kind == "glue"
                    if not glued and f[pos].kind != "glue" and c > credit:
                        break
                    credit -= c
                    out.append(f[pos]); pos += 1
                if pos >= len(f):
                    credit = 0.0
            n += 1
    return out, S(f[pos:])


def spread(main, extra, every, start=0):
    out = S()
    groups = list(extra)
    acc = -start
    prev_glue = False
    for ins in main:
        if groups and acc >= every and not prev_glue and ins.kind != "glue":
            out.extend(groups.pop(0)); acc = 0
        out.append(ins)
        prev_glue = ins.kind == "glue"
        if ins.kind not in ("mark", "glue", "label", "wait", "waitall"):
            acc += ins.cost
    return out, groups


def resolve(stream):
    out = S()
    vm, lg = [], []
    vm_done = lg_done = 0
    vm_idx, lg_idx = {}, {}
    pend = {}
    smem_pend = set()

    def emit_wait(nv, nl):
        parts = []
        if nv is not None:
            parts.append(f"vmcnt({nv})")
        if nl is not None:
            parts.append(f"lgkmcnt({nl})")
        if parts:
            out.append(I("s_waitcnt " + " ".join(parts)))

    def need(targets):
        nonlocal vm_done, lg_done
        v = max([vm_idx[id(t)] for t in targets if id(t) in vm_idx], default=-1)
        l = max([lg_idx[id(t)] for t in targets if id(t) in lg_idx], default=-1)
        for t in targets:
            assert id(t) in vm_idx or id(t) in lg_idx, f"wait target not issued yet: {t}"
        nv = nl = None
        if v >= vm_done:
            nv = min(63, len(vm) - 1 - v); vm_done = len(vm) - nv
        if l >= lg_done:
            nl = min(15, len(lg) - 1 - l)
            if smem_pend:
                nl = 0
            lg_done = len(lg) - nl
            if nl == 0:
                smem_pend.clear()
        emit_wait(nv, nl)

    for ins in stream:
        if ins.kind in ("mark", "glue"):
            continue
        if ins.kind == "wait":
            need(ins.tgt); continue
        if ins.kind == "waitall":
            v, l = ins.tgt
            emit_wait(0 if v else None, 0 if l else None)
            if v: vm_done = len(vm)
            if l: lg_done = len(lg); smem_pend.clear()
            continue
        touched = ins.r | ins.w
        if touched & smem_pend:
            emit_wait(None, 0); lg_done = len(lg); smem_pend.clear()
        t = [pend[x] for x in touched if x in pend]
        if t:
            need(t)
            for x in touched:
                pend.pop(x, None)
        out.append(ins)
        if is_vm(ins):
            vm_idx[id(ins)] = len(vm); vm.append(ins)
        if is_lg(ins):
            lg_idx[id(ins)] = len(lg); lg.append(ins)
        if ins.kind in ("vm_ld", "ds_r"):
            for x in ins.w:
                pend[x] = ins
        if ins.kind == "smem":
            smem_pend |= ins.w
    return out


def states(ins):
    if ins.kind == "label":
        return 0
    if ins.op == "s_nop":
        return int(ins.text.split()[1]) + 1
    return 1


def required(p, c):
    n = 0
    valu_p = p.kind in ("valu", "trans")
    valu_c = c.kind in ("valu", "trans")
    mf_p = p.kind in ("mfma32", "mfma16")
    mf_c = c.kind in ("mfma32", "mfma16")
    mem_c = is_vm(c) or is_lg(c)
    vw = {x for x in p.w if x[0] in "va"}
    sw = {x for x in p.w if x[0] == "s"}
    if valu_p:
        if mf_c and vw & c.r: n = max(n, 2)
        if valu_c and vw & c.r:
            if "permlane" in c.op or c.op.endswith("_dpp"): n = max(n, 2)
            if c.op.startswith(("v_readfirstlane", "v_readlane")): n = max(n, 1)
            if p.kind == "trans": n = max(n, 1)
        if sw & c.r:
            if valu_c: n = max(n, 2)
            if is_vm(c): n = max(n, 5)
        if p.op.startswith("v_dot2") and (valu_c or mf_c or mem_c) and vw & (c.r | c.w):
            same_acc = c.op == p.op and c.w == p.w
            if not same_acc: n = max(n, 3)
    if mf_p:
        big = p.kind == "mfma32"
        if (valu_c or mem_c) and p.w & (c.r | c.w): n = max(n, 12 if big else 8)
        if mf_c:
            if p.w & c.ab: n = max(n, 12 if big else 8)
            if p.w & c.srcc and not (c.srcc == p.w and c.kind == p.kind): n = max(n, 10 if big else 6)
            if p.w & c.w and not (p.w & c.srcc): n = max(n, 12 if big else 8)
        if valu_c and p.srcc & c.w: n = max(n, 7 if big else 3)
    if p.kind == "salu" and ("s", "m0") in p.w and c.kind == "vm_dma": n = max(n, 1)
    if p.wide_store and p.data & c.w: n = max(n, 2)
    return n


def pad_hazards(stream):
    out = S()
    for c in stream:
        if c.kind != "label":
            dist, need_n = 0, 0
            for p in reversed(out):
                if dist >= 12:
                    break
                need_n = max(need_n, required(p, c) - dist)
                dist += states(p)
            if need_n > 0:
                out.append(I(f"s_nop {need_n - 1}"))
        out.append(c)
    return out


def text_of(stream):
    return "".join((i.text if i.kind == "label" else "  " + i.text) + "\n" for i in stream)


def finish(stream):
    return pad_hazards(resolve(stream))
```

```python
import math, struct, sys
from asmlib import *

KNAME = "gated_mix__linear_attn_block__mixer_gmlp__prompt_kernel"

Z2F = 0x0001000
Z1F = 0x0400000
AF  = 0x0800000
WF  = 0x1000000
KVT_G = 0x1200000
ST  = 0x1240000
GG  = 0x12C0000
FL  = 0x12D0000
F_ZERO, F_REP, F_Z2, F_Z1, F_KV, F_O, F_U, EPOCH = (FL + k * 0x1000 for k in (0, 1, 2, 3, 4, 5, 6, 8))
STAMP = 0x1400000
WS_BYTES = 0x2000000
OOB = 0x40000000
TAG_INC = 0x9E3779B1

XR = 0
WR = 65536
PKV, PKV_P = 0, 272
KVL, KVL_P = 44032, 168
KVL_DUMMY = 60416
TB_P = 272
AST = 65536
LDS_BYTES = 163840

SX, SW, SWS, SSP, SOUT, SBS, SGW = 4, 8, 12, 16, 20, 24, 28
P_X, P_WQKV, P_WO, P_WIN, P_WSP, P_BSP, P_WOUT, P_GW, P_OUT, P_DBG, P_WS = 36, 38, 40, 44, 46, 48, 50, 52, 54, 56, 58
sWAVE, sRB, sROLE, sTAG, sTB, sFG, sNG, sRSEL = 60, 61, 62, 63, 64, 65, 66, 67
sRG = 68
sCNT = 69
sROW = 70
sAB, sT0, sT1, sT2, sT3, sT4, sT5 = 74, 75, 76, 77, 78, 79, 80
sXB, sWB, sXO, sWO = 81, 82, 83, 84
sFT0, sFT6, sPM0, sPM6 = 85, 86, 87, 88
sSTAMP = 98

vTID, vLANE, vTAG, vL0 = 0, 1, 2, 3

def srd(n): return f"s[{n}:{n+3}]"
def vr(a, n): return f"v[{a}:{a+n-1}]" if n > 1 else f"v{a}"
def ar(a, n): return f"a[{a}:{a+n-1}]"
def f32(x): return "0x%08x" % struct.unpack("<I", struct.pack("<f", x))[0]

LOG2E = math.log2(math.e)
GC1 = -2.0 * LOG2E * math.sqrt(2.0 / math.pi)
GC2 = GC1 * 0.044715


class Gen:
    def __init__(self, **opt):
        self.o = dict(spin=1 << 20, stamps=False, R=6, fillz=3.0, fillq=3.0)
        self.o.update(opt)
        self.retry = []
        self.nlabel = 0

    def stamp(self, s, idx):
        if not self.o["stamps"]:
            return
        s(f"s_memrealtime s[{sSTAMP}:{sSTAMP+1}]")
        s(f"s_lshl_b32 s{sSTAMP+2}, s2, 2\ns_add_u32 s{sSTAMP+2}, s{sSTAMP+2}, s{sWAVE}\ns_lshl_b32 s{sSTAMP+2}, s{sSTAMP+2}, 7")
        s(f"s_add_u32 s{sSTAMP+2}, s{sSTAMP+2}, {STAMP + 4*idx}")
        s(f"v_mov_b32 v255, s{sSTAMP}")
        s(f"buffer_store_dword v255, v{vL0}, {srd(SWS)}, s{sSTAMP+2} offen")

    def flag(self, s, soff):
        return s(f"buffer_store_dword v{vTAG}, v{vL0}, {srd(SWS)}, s{soff} offen sc1")

    def check(self, s, loads, test):
        k = self.nlabel; self.nlabel += 1
        s(test)
        s.glue()
        s(f"s_cbranch_vccnz L_retry{k}")
        s.glue()
        s(f"L_back{k}:")
        r = S()
        r(f"L_retry{k}:\ns_mov_b32 s{sCNT}, 0\nL_loop{k}:\ns_sleep 4")
        r(loads)
        r.wait_all(vm=True, lg=False)
        r(test)
        r(f"s_add_u32 s{sCNT}, s{sCNT}, 1\ns_cmp_gt_u32 s{sCNT}, {self.o['spin']}\ns_cbranch_scc1 L_back{k}\ns_cbranch_vccnz L_loop{k}\ns_branch L_back{k}")
        self.retry.append(r)

    def poll(self, s, vdst, vaddr):
        ld = f"buffer_load_dword v{vdst}, v{vaddr}, {srd(SWS)}, 0 offen sc1"
        s(ld)
        return lambda t: self.check(t, ld, f"v_cmp_ne_u32 vcc, s{sTAG}, v{vdst}")

    def gelu(self, s, regs, tmp, c1, c2, stats=None):
        for i in range(0, len(regs), 4):
            g = list(zip(regs[i:i+4], tmp))
            for x, t in g: s(f"v_mul_f32 v{t}, v{x}, v{x}")
            for x, t in g: s(f"v_fma_f32 v{t}, v{t}, v{c2}, v{c1}")
            for x, t in g: s(f"v_mul_f32 v{t}, v{t}, v{x}")
            for x, t in g: s(f"v_exp_f32 v{t}, v{t}")
            for x, t in g: s(f"v_add_f32 v{t}, 1.0, v{t}")
            for x, t in g: s(f"v_rcp_f32 v{t}, v{t}")
            for x, t in g: s(f"v_mul_f32 v{x}, v{x}, v{t}")
            if stats:
                for x, t in g:
                    s(f"v_add_f32 v{stats[0]}, v{stats[0]}, v{x}")
                    s(f"v_fmac_f32 v{stats[1]}, v{x}, v{x}")

    def phi(self, s, regs, tmp, sl2e, seps, mask=None):
        for i in range(0, len(regs), 4):
            g = list(zip(regs[i:i+4], tmp[:4], tmp[4:8]))
            for x, t, u in g: s(f"v_mul_f32 v{t}, s{sl2e}, v{x}")
            for x, t, u in g: s(f"v_exp_f32_e64 v{t}, v{t} clamp")
            if mask is None:
                for x, t, u in g: s(f"v_max_f32 v{x}, s{seps}, v{x}")
                for x, t, u in g: s(f"v_add_f32 v{x}, v{x}, v{t}")
            else:
                for x, t, u in g: s(f"v_max_f32 v{u}, s{seps}, v{x}")
                for x, t, u in g: s(f"v_add_f32 v{u}, v{u}, v{t}")
                for x, t, u in g: s(f"v_cndmask_b32_e64 v{x}, v{x}, v{u}, s[{mask}:{mask+1}]")

    def prologue(self):
        s = S()
        s(f"""
        s_cmp_ge_u32 s2, 256
        s_cbranch_scc1 L_end
        s_load_dwordx16 s[36:51], s[0:1], 0
        s_load_dwordx8 s[52:59], s[0:1], 64
        s_getpc_b64 s[32:33]
        L_pc:
        s_lshr_b32 s3, s2, 3
        s_and_b32 s{sT0}, s3, 1
        s_lshl_b32 s{sT0}, s{sT0}, 15
        v_lshlrev_b32 v254, 7, v0
        v_add_u32 v254, s{sT0}, v254
        s_mov_b32 s{sT1}, L_code_end-L_pc-4
        v_min_u32 v254, s{sT1}, v254
        global_load_dword v253, v254, s[32:33]
        v_lshrrev_b32 v4, 6, v0
        v_and_b32 v{vLANE}, 63, v0
        s_and_b32 s{sT0}, s2, 7
        v_readfirstlane_b32 s{sWAVE}, v4
        s_and_b32 s{sT1}, s{sT0}, 1
        s_lshr_b32 s{sT2}, s{sT0}, 1
        s_and_b32 s{sT3}, s3, 7
        s_lshr_b32 s{sRSEL}, s3, 3
        s_lshl_b32 s{sRB}, s{sT1}, 3
        s_add_u32 s{sRB}, s{sRB}, s{sT3}
        s_lshl_b32 s{sROLE}, s{sT2}, 1
        s_and_b32 s{sT4}, s{sRSEL}, 1
        s_add_u32 s{sROLE}, s{sROLE}, s{sT4}
        s_lshl_b32 s{sTB}, s{sT2}, 3
        s_add_u32 s{sTB}, s{sTB}, s{sT3}
        s_lshl_b32 s{sNG}, s{sT1}, 2
        s_add_u32 s{sNG}, s{sNG}, s{sRSEL}
        s_mul_i32 s{sFG}, s{sT1}, 3
        s_add_u32 s{sFG}, s{sFG}, s{sRSEL}
        s_sub_u32 s{sFG}, s{sFG}, 1
        s_add_u32 s{sT4}, s{sT1}, 6
        s_cmp_eq_u32 s{sRSEL}, 0
        s_cselect_b32 s{sFG}, s{sT4}, s{sFG}
        s_lshl_b32 s{sRG}, s{sRB}, 2
        s_add_u32 s{sRG}, s{sRG}, s{sWAVE}
        v_cmp_eq_u32 vcc, 0, v{vLANE}
        v_mov_b32 v5, {OOB}
        v_cndmask_b32_e64 v{vL0}, v5, 0, vcc
        """)
        s(f"""
        v_lshrrev_b32 v8, 3, v{vLANE}
        v_and_b32 v9, 7, v{vLANE}
        v_lshrrev_b32 v10, 4, v{vLANE}
        v_xor_b32 v9, v9, v10
        v_lshlrev_b32 v9, 4, v9
        s_lshl_b32 s{sT0}, s{sRG}, 5
        v_add_u32 v8, s{sT0}, v8
        v_mul_u32_u24 v8, 1280, v8
        v_add_u32 v4, v8, v9
        v_xor_b32 v9, 64, v9
        v_add3_u32 v5, v8, v9, 0
        v_add_u32 v5, {10240-1024}, v5
        v_add_u32 v6, {2*(10240-1024)}, v4
        v_add_u32 v7, {2*(10240-1024)}, v5
        s_lshl_b32 s{sXB}, s{sWAVE}, 12
        """)
        for n, p, size in ((SX, P_X, 2048*1280), (SWS, P_WS, WS_BYTES), (SSP, P_WSP, 2048*4096), (SOUT, P_OUT, 2048*1280),
                           (SBS, P_BSP, 4096), (SGW, P_GW, 1280)):
            s(f"s_mov_b32 s{n}, s{p}\ns_mov_b32 s{n+1}, s{p+1}\ns_mov_b32 s{n+2}, {size}\ns_mov_b32 s{n+3}, 0x20000")
        s(f"""
        s_cmp_lt_u32 s{sRSEL}, 2
        s_cselect_b32 s{SW}, s{P_WQKV}, s{P_WIN}
        s_cselect_b32 s{SW+1}, s{P_WQKV+1}, s{P_WIN+1}
        s_mov_b32 s{sT0}, {640*3456}
        s_cselect_b32 s{SW+2}, {640*3840}, s{sT0}
        s_mov_b32 s{SW+3}, 0x20000
        """)
        self.stamp(s, 0)
        s(f"""
        s_cmp_lt_u32 s{sRSEL}, 2
        s_cbranch_scc1 L_qkv
        s_cmp_eq_u32 s{sROLE}, 7
        s_cbranch_scc1 L_misc
        """)
        return s

    def load_tag(self, s):
        s(f"v_mov_b32 v{vTAG}, {EPOCH}")
        s(f"buffer_load_dword v{vTAG}, v{vTAG}, {srd(SWS)}, 0 offen sc1")

    def make_tag(self, s):
        s(f"v_add_u32 v{vTAG}, {TAG_INC}, v{vTAG}\nv_readfirstlane_b32 s{sTAG}, v{vTAG}")

    def x_read_addrs(self, s):
        s(f"""
        v_and_b32 v28, 31, v{vLANE}
        v_lshrrev_b32 v29, 5, v{vLANE}
        v_bfe_u32 v30, v{vLANE}, 1, 3
        v_xor_b32 v29, v29, v30
        v_lshlrev_b32 v29, 4, v29
        v_lshl_add_u32 v8, v28, 7, v29
        v_add_u32 v8, s{sXB}, v8
        v_xor_b32 v9, 32, v8
        v_xor_b32 v10, 64, v8
        v_xor_b32 v11, 96, v8
        """)

    def x_dma(self, g):
        u = []
        for j in range(4):
            t = S()
            if j == 0:
                t(f"s_add_u32 m0, s{sXB}, {XR + (g % 4)*16384}\ns_mov_b32 s{sXO}, {g*128}")
            t(f"buffer_load_dwordx4 v{4+j}, {srd(SX)}, s{sXO} offen offset:{j*1024} lds")
            u.append(t)
        return u

    def stage1(self, items, nstage, w_dma, pre):
        R = self.o["R"]
        FB = 40
        s = S()
        last = {}
        def issue(units, key):
            for t in units:
                s.extend(t)
            last[key] = units[-1][-1]
        for g in range(4):
            issue(self.x_dma(g), ("x", g)); issue(w_dma(g), ("w", g))
            if g == 0:
                self.load_tag(s)
        s.extend(pre)
        queue = []
        bars = {}
        seen = set()
        xrd = {}
        def reads(n):
            it = items[n]; g = it["g"]
            if g not in seen:
                seen.add(g)
                while queue and (("w", g) not in last or (g < 10 and ("x", g) not in last)):
                    pop()
                s.wait(last.get(("x", g)), last[("w", g)])
                bars[g] = s("s_barrier")
                if g == 1:
                    self.make_tag(s)
                if g >= 2 and g + 2 < nstage:
                    us = w_dma(g + 2); queue.extend((t, ("w", g + 2) if t is us[-1] else None) for t in us)
                if g >= 1 and g + 3 < 10:
                    us = self.x_dma(g + 3); us[0].insert(0, I("wait", kind="wait", tgt=[xrd[g - 1]])); queue.extend((t, ("x", g + 3) if t is us[-1] else None) for t in us)
            if it["chunk"] == 0 and it["first_tile"]:
                j = it["j"]
                xrd[g] = s(f"ds_read_b128 {ar(4*j, 4)}, v{8 + (j & 3)} offset:{XR + (g % 4)*16384}")
            for t in it["reads"](FB + 4*(n % R)):
                s(t)
        def pop():
            t, key = queue.pop(0)
            s.extend(t)
            if key: last[key] = t[-1]
        for n in range(R):
            reads(n)
        for n, it in enumerate(items):
            if it["chunk"] == 1 and items[n-1]["chunk"] == 0:
                s.mark("chunk2")
            b = vr(FB + 4*(n % R), 4); x = ar(4*it["j"], 4); acc = vr(it["acc"], 16)
            c = "0" if it["init"] else acc
            s(f"v_mfma_f32_32x32x16_bf16 {acc}, {b}, {x}, {c}" if it["tr"] else f"v_mfma_f32_32x32x16_bf16 {acc}, {x}, {b}, {c}")
            if n + R < len(items):
                reads(n + R)
            if queue:
                pop()
        k = next(i for i, x in enumerate(s) if x.kind == "mark" and x.text == "chunk2")
        return S(s[:k]), S(s[k+1:]), bars

    def tr_lane(self, s, vr_, vc, vch, vh):
        s(f"""
        v_bfe_u32 v{vr_}, v{vLANE}, 2, 2
        v_and_b32 v{vc}, 3, v{vLANE}
        v_bfe_u32 v{vch}, v{vLANE}, 4, 1
        v_lshrrev_b32 v{vh}, 5, v{vLANE}
        """)

    def a_setup(self, s):
        s(f"""
        v_lshrrev_b32 v8, 3, v{vLANE}
        v_and_b32 v9, 7, v{vLANE}
        v_lshrrev_b32 v10, 4, v{vLANE}
        v_xor_b32 v9, v9, v10
        v_lshlrev_b32 v9, 4, v9
        v_lshl_add_u32 v4, v8, 12, v9
        v_xor_b32 v5, 64, v4
        v_add_u32 v5, {8*4096-1024}, v5
        s_mul_i32 s{sAB}, s{sWAVE}, 24576
        s_add_u32 s{sAB}, s{sAB}, {AST}
        v_and_b32 v8, 15, v{vLANE}
        v_lshrrev_b32 v9, 1, v8
        v_xor_b32 v9, v9, v10
        v_lshlrev_b32 v9, 4, v9
        v_lshl_add_u32 v6, v8, 7, v9
        v_add_u32 v6, s{sAB}, v6
        v_xor_b32 v7, 64, v6
        s_lshl_b32 s{sT0}, s{sTB}, 18
        s_lshl_b32 s{sT1}, s{sWAVE}, 10
        s_add_u32 s{sT0}, s{sT0}, s{sT1}
        """)
        for m in range(4):
            s(f"s_add_u32 s{sT1}, s{sWAVE}, {m}\ns_and_b32 s{sT1}, s{sT1}, 3\ns_lshl_b32 s{sT1}, s{sT1}, 16\ns_add_u32 s{sROW+m}, s{sT0}, s{sT1}")

    def a_dma(self, c):
        u = []
        for m in range(4):
            t = S()
            t(f"s_add_u32 m0, s{sAB}, {(c % 3)*8192 + m*2048}\ns_add_u32 s{sXO}, s{sROW+m}, {c*128}")
            t(f"buffer_load_dwordx4 v4, {srd(SSP)}, s{sXO} offen lds")
            t(f"buffer_load_dwordx4 v5, {srd(SSP)}, s{sXO} offen offset:1024 lds")
            u.append(t)
        return u

    def a_read(self, s, c):
        last = None
        for jj in range(2):
            for m in range(4):
                last = s(f"ds_read_b128 {ar((2*c+jj)*16 + 4*m, 4)}, v{6+jj} offset:{(c % 3)*8192 + m*2048}")
        return last

    def role_z(self):
        pre0 = S()
        pre0(f"""
        v_lshrrev_b32 v28, 4, v{vLANE}
        v_bfe_u32 v29, v{vLANE}, 2, 2
        v_xor_b32 v29, v29, v28
        v_and_b32 v30, 3, v{vLANE}
        v_lshlrev_b32 v30, 4, v30
        v_lshl_add_u32 v29, v29, 6, v30
        s_lshl_b32 s{sT0}, s{sWAVE}, 4
        v_add_u32 v28, s{sT0}, v28
        v_mul_u32_u24 v28, 3456, v28
        s_lshl_b32 s{sT0}, s{sROLE}, 8
        v_add3_u32 v12, v28, v29, s{sT0}
        v_add_u32 v13, {4*3456-1024}, v12
        v_add_u32 v14, {2*(4*3456-1024)}, v12
        v_add_u32 v15, {3*(4*3456-1024)}, v12
        s_add_u32 s{sWB}, s{sXB}, {WR}
        """)
        def w_dma(g):
            u = []
            for j in range(4):
                t = S()
                if j == 0:
                    off = (g % 10)*64*3456 + (1664 if g < 10 else 0)
                    t(f"s_add_u32 m0, s{sWB}, {(g % 4)*16384}\ns_mov_b32 s{sWO}, {off}")
                t(f"buffer_load_dwordx4 v{12+j}, {srd(SW)}, s{sWO} offen offset:{j*1024} lds")
                u.append(t)
            return u
        pre = S()
        self.x_read_addrs(pre)
        self.tr_lane(pre, 28, 29, 30, 31)
        pre(f"""
        v_lshl_add_u32 v31, v31, 3, v28
        v_lshlrev_b32 v31, 8, v31
        v_lshl_add_u32 v31, v30, 5, v31
        v_lshl_add_u32 v31, v29, 3, v31
        v_lshl_add_u32 v31, v28, 6, v31
        v_add_u32 v22, {WR}, v31
        v_xor_b32 v23, 64, v22
        v_xor_b32 v24, 128, v22
        v_xor_b32 v25, 192, v22
        """)
        items = []
        for g in range(20):
            for ks in range(4):
                for t in range(4):
                    off = (g % 4)*16384 + ks*4096
                    items.append(dict(g=g, j=(g % 10)*4 + ks, first_tile=t == 0, chunk=g // 10, acc=64 + 64*(g // 10) + 16*t,
                                      init=(g % 10 == 0 and ks == 0), tr=True,
                                      reads=lambda b, t=t, off=off: [f"ds_read_b64_tr_b16 {vr(b,2)}, v{22+t} offset:{off}",
                                                                     f"ds_read_b64_tr_b16 {vr(b+2,2)}, v{22+t} offset:{off+1024}"]))
        c1, c2, bars = self.stage1(items, 20, w_dma, pre)
        C1, C2, S1, S2 = 32, 33, 36, 38
        tmp = [192, 193, 194, 195]
        f = S()
        f(f"v_mov_b32 v{C1}, {f32(GC1)}\nv_mov_b32 v{C2}, {f32(GC2)}\nv_mov_b32 v{S1}, 0\nv_mov_b32 v{S2}, 0")
        f(f"s_cmp_eq_u32 s{sROLE}, 0")
        f.glue()
        f(f"s_cselect_b32 s{sT2}, 0, 1.0")
        for t in range(4):
            self.gelu(f, list(range(64 + 16*t, 80 + 16*t)), tmp, C1, C2, stats=(S1, S2))
            if t == 0:
                f(f"v_mul_f32 v{S1}, s{sT2}, v{S1}\nv_mul_f32 v{S2}, s{sT2}, v{S2}")
        f(f"""
        v_mov_b32 v{S1+1}, v{vTAG}
        v_mov_b32 v{S2+1}, v{vTAG}
        v_lshlrev_b32 v34, 4, v{vLANE}
        s_lshl_b32 s{sT3}, s{sRG}, 13
        s_add_u32 s{sT3}, s{sT3}, {ST}
        s_lshl_b32 s{sT4}, s{sROLE}, 10
        s_add_u32 s{sT4}, s{sT4}, s{sT3}
        buffer_store_dwordx4 {vr(S1,4)}, v34, {srd(SWS)}, s{sT4} offen sc1
        """)
        c2m, rest = interleave(c2, f, self.o["fillz"])
        s = S(pre0); s.extend(c1); self.stamp(s, 1); s.extend(c2m); s.extend(rest)
        self.stamp(s, 2)
        G0 = 196
        lds_ = "\n".join(f"buffer_load_dwordx4 {vr(G0+4*c,4)}, v{34 if c < 4 else 35}, {srd(SWS)}, s{sT3} offen offset:{(c & 3)*1024} sc1" for c in range(7))
        s(f"v_add_u32 v35, 4096, v34")
        s(lds_)
        s.wait_all(vm=False, lg=True)
        s("s_barrier")
        self.a_setup(s)
        for c in range(3):
            for t in self.a_dma(c): s.extend(t)
        test = "v_mov_b32 v192, 0\n" + "".join(
            f"v_xor_b32 v193, s{sTAG}, v{G0+4*c+1}\nv_xor_b32 v194, s{sTAG}, v{G0+4*c+3}\nv_or3_b32 v192, v192, v193, v194\n" for c in range(7)) + "v_cmp_ne_u32 vcc, 0, v192"
        self.check(s, lds_, test)
        self.stamp(s, 3)
        for c in range(1, 7):
            s(f"v_add_f32 v{G0}, v{G0}, v{G0+4*c}\nv_add_f32 v{G0+2}, v{G0+2}, v{G0+4*c+2}")
        s(f"""
        v_mov_b32 v{G0+1}, v{G0}
        v_mov_b32 v{G0+3}, v{G0+2}
        v_permlane32_swap_b32 v{G0}, v{G0+1}
        v_permlane32_swap_b32 v{G0+2}, v{G0+3}
        v_add_f32 v{G0}, v{G0}, v{G0+1}
        v_add_f32 v{G0+2}, v{G0+2}, v{G0+3}
        v_mul_f32 v{G0}, {f32(1/864)}, v{G0}
        v_mul_f32 v{G0+2}, {f32(1/864)}, v{G0+2}
        v_fma_f32 v{G0+2}, -v{G0}, v{G0}, v{G0+2}
        v_max_f32 v{G0+2}, 0, v{G0+2}
        v_add_f32 v{G0+2}, {f32(1e-5)}, v{G0+2}
        v_rsq_f32 v{G0+2}, v{G0+2}
        """)
        s(f"""
        s_mul_i32 s{sT0}, s{sWAVE}, {32*TB_P}
        v_and_b32 v28, 31, v{vLANE}
        v_lshrrev_b32 v29, 5, v{vLANE}
        v_mul_u32_u24 v30, {TB_P}, v28
        v_lshl_add_u32 v30, v29, 3, v30
        v_add_u32 v12, s{sT0}, v30
        v_mul_f32 v{G0}, v{G0}, v{G0+2}
        v_lshrrev_b32 v30, 4, v{vLANE}
        v_bfe_u32 v31, v{vLANE}, 2, 2
        v_lshl_add_u32 v30, v30, 3, v31
        v_mul_u32_u24 v30, {TB_P}, v30
        v_and_b32 v31, 3, v{vLANE}
        v_lshl_add_u32 v30, v31, 3, v30
        v_add_u32 v13, s{sT0}, v30
        s_mul_i32 s{sT0}, s{sRG}, {54*1024}
        s_lshl_b32 s{sT1}, s{sROLE}, 13
        s_add_u32 s{sT0}, s{sT0}, s{sT1}
        s_add_u32 s{sT0}, s{sT0}, {Z2F - 2048}
        v_add_u32 v14, s{sT0}, v34
        v_add_u32 v15, 4096, v14
        s_cmp_eq_u32 s{sROLE}, 0
        s_cselect_b32 s{sT1}, {OOB}, 0
        v_add_u32 v16, s{sT1}, v14
        """)
        P0, F0 = 200, 208
        zst = None
        for t in range(4):
            a = 64 + 16*t
            for r in range(16):
                s(f"v_fma_f32 v{a+r}, v{a+r}, v{G0+2}, -v{G0}")
            for r in range(8):
                s(f"v_cvt_pk_bf16_f32 v{a+r}, v{a+2*r}, v{a+2*r+1}")
            for g in range(4):
                w = s(f"ds_write_b64 v12, {vr(a+2*g,2)} offset:{t*64 + g*16}")
        s.wait(w)
        for t in range(4):
            for j in range(2):
                b = F0 + 8*t + 4*j
                s(f"ds_read_b64_tr_b16 {vr(b,2)}, v13 offset:{t*64 + j*32}")
                s(f"ds_read_b64_tr_b16 {vr(b+2,2)}, v13 offset:{t*64 + j*32 + 4*TB_P}")
        for t in range(4):
            for j in range(2):
                b = F0 + 8*t + 4*j
                va = 16 if t == 0 else (14 if t == 1 else 15)
                zst = s(f"buffer_store_dwordx4 {vr(b,4)}, v{va}, {srd(SWS)}, 0 offen offset:{((t & 1)*2 + j)*1024} sc1")
        self.stamp(s, 4)
        s(f"""
        v_lshrrev_b32 v30, 4, v28
        s_lshl_b32 s{sT0}, s{sRG}, 1
        v_add_u32 v30, s{sT0}, v30
        v_mul_u32_u24 v30, {27*1024}, v30
        v_and_b32 v31, 15, v28
        v_lshl_add_u32 v31, v29, 4, v31
        v_lshl_add_u32 v30, v31, 4, v30
        s_lshl_b32 s{sT0}, s{sROLE}, 12
        s_add_u32 s{sT0}, s{sT0}, {Z1F}
        v_add_u32 v12, s{sT0}, v30
        s_cmp_eq_u32 s{sROLE}, 6
        s_cselect_b32 s{sT1}, {OOB}, 0
        v_add_u32 v13, s{sT1}, v12
        s_lshl_b32 s{sT2}, s{sROLE}, 8
        s_lshl_b32 s{sT3}, s{sRG}, 2
        s_add_u32 s{sT2}, s{sT2}, s{sT3}
        s_add_u32 s{sT3}, s{sT2}, {F_Z2}
        s_add_u32 s{sT4}, s{sT2}, {F_Z1}
        """)
        z1st = None
        for t in range(4):
            a = 128 + 16*t
            self.gelu(s, list(range(a, a + 16)), tmp, C1, C2)
            p = 64 + 8*t
            for k, g in enumerate((0, 2, 1, 3)):
                s(f"v_cvt_pk_bf16_f32 v{p+2*k}, v{a+4*g}, v{a+4*g+1}\nv_cvt_pk_bf16_f32 v{p+2*k+1}, v{a+4*g+2}, v{a+4*g+3}")
            if t == 1:
                s.wait(zst); self.flag(s, sT3)
            for pc in range(2):
                z1st = s(f"buffer_store_dwordx4 {vr(p+4*pc,4)}, v{13 if t == 3 else 12}, {srd(SWS)}, 0 offen offset:{t*1024 + pc*512} sc1")
        s.wait(z1st); self.flag(s, sT4)
        self.stamp(s, 5)
        s("s_branch L_tail")
        return s

    def role_qkv(self):
        pre0 = S()
        pre0("L_qkv:")
        pre0(f"s_mul_i32 s{sT0}, s{sROLE}, 160\ns_mul_i32 s{sT1}, s{sWAVE}, {16*3840}\ns_add_u32 s{sT1}, s{sT1}, s{sT0}\ns_add_u32 s{sT1}, s{sT1}, 1280")
        pre0(f"s_mul_i32 s{sWB}, s{sWAVE}, 5120\ns_add_u32 s{sWB}, s{sWB}, {WR}")
        assert all((n*3277) >> 16 == n // 20 for n in range(320)) and all((n*6554) >> 16 == n // 10 for n in range(320))
        for j in range(5):
            imm = (j & 3)*1024
            pre0(f"""
            v_add_u32 v28, {64*j}, v{vLANE}
            v_mul_u32_u24 v29, 3277, v28
            v_lshrrev_b32 v29, 16, v29
            v_mul_u32_u24 v30, 20, v29
            v_sub_u32 v28, v28, v30
            v_cmp_lt_u32 vcc, 9, v28
            v_mul_u32_u24 v29, 3840, v29
            v_lshl_add_u32 v29, v28, 4, v29
            v_add_u32 v30, {1280-160}, v29
            v_cndmask_b32 v29, v29, v30, vcc
            v_add_u32 v29, s{sT1}, v29
            v_subrev_u32 v{12+j}, {imm}, v29
            """)
        def w_dma(g):
            u = []
            for j in range(5):
                t = S()
                if j == 0:
                    off = g*64*3840 if g < 10 else (g - 10)*128*3840
                    t(f"s_add_u32 m0, s{sWB}, {(g % 4)*20480}\ns_mov_b32 s{sWO}, {off}")
                if j == 4:
                    t(f"s_add_u32 m0, s{sWB}, {(g % 4)*20480 + 4096}")
                t(f"buffer_load_dwordx4 v{(12 if g < 10 else 17)+j}, {srd(SW)}, s{sWO} offen offset:{(j & 3)*1024} lds")
                u.append(t)
            return u
        pre = S()
        self.x_read_addrs(pre)
        pre(f"s_mul_i32 s{sT1}, s{sWAVE}, {32*3840}\ns_add_u32 s{sT1}, s{sT1}, s{sT0}")
        for j in range(5):
            imm = (j & 3)*1024
            pre(f"""
            v_add_u32 v28, {64*j}, v{vLANE}
            v_mul_u32_u24 v29, 6554, v28
            v_lshrrev_b32 v29, 16, v29
            v_mul_u32_u24 v30, 10, v29
            v_sub_u32 v28, v28, v30
            v_and_b32 v30, 24, v29
            v_bfe_u32 v31, v29, 1, 2
            v_and_b32 v29, 1, v29
            v_lshl_add_u32 v29, v29, 2, v31
            v_add_u32 v29, v29, v30
            v_mul_u32_u24 v29, 3840, v29
            v_lshl_add_u32 v29, v28, 4, v29
            v_add_u32 v29, s{sT1}, v29
            v_subrev_u32 v{17+j}, {imm}, v29
            """)
        self.tr_lane(pre, 28, 29, 30, 31)
        pre(f"""
        v_lshl_add_u32 v32, v31, 3, v28
        v_mul_u32_u24 v32, 320, v32
        v_lshl_add_u32 v32, v29, 3, v32
        v_add_u32 v32, {WR}, v32
        v_lshl_add_u32 v22, v30, 5, v32
        v_add_u32 v23, 40960, v22
        v_mul_u32_u24 v33, 160, v30
        v_add_u32 v24, v33, v32
        v_add_u32 v25, 40960, v24
        v_lshl_add_u32 v32, v31, 2, v28
        v_mul_u32_u24 v32, 320, v32
        v_lshl_add_u32 v32, v29, 3, v32
        v_lshl_add_u32 v32, v30, 5, v32
        v_add_u32 v26, {WR}, v32
        v_add_u32 v27, 40960, v26
        """)
        items = []
        for g in range(10):
            for ks in range(4):
                for t, (vb, col) in enumerate(((22, 0), (22, 64), (24, 128), (22, 160), (22, 224))):
                    sl = g % 4
                    off = (sl & 1)*20480 + ks*16*320 + col
                    items.append(dict(g=g, j=g*4 + ks, first_tile=t == 0, chunk=0, acc=64 + 16*t, init=(g == 0 and ks == 0), tr=False,
                                      reads=lambda b, v=vb + (sl >> 1), off=off: [f"ds_read_b64_tr_b16 {vr(b,2)}, v{v} offset:{off}",
                                                                                 f"ds_read_b64_tr_b16 {vr(b+2,2)}, v{v} offset:{off+1280}"]))
        for g in range(10, 15):
            for ks in range(8):
                for t in range(3):
                    sl = g % 4
                    off = (sl & 1)*20480 + ks*16*160 + t*64
                    items.append(dict(g=g, j=(g - 10)*8 + ks, first_tile=t == 0, chunk=1, acc=144 + 16*t, init=(g == 10 and ks == 0), tr=True,
                                      reads=lambda b, v=26 + (sl >> 1), off=off: [f"ds_read_b64_tr_b16 {vr(b,2)}, v{v} offset:{off}",
                                                                                 f"ds_read_b64_tr_b16 {vr(b+2,2)}, v{v} offset:{off+160}"]))
        c1, c2, bars = self.stage1(items, 15, w_dma, pre)
        sL2E, sEPS, sMASK = 92, 93, 94
        tmp = list(range(192, 200))
        f = S()
        f(f"""
        s_mov_b32 s{sL2E}, {f32(LOG2E)}
        s_mov_b32 s{sEPS}, {f32(1e-6)}
        s_mov_b32 s{sMASK}, 0xffff
        s_mov_b32 s{sMASK+1}, 0xffff
        s_lshl_b32 s{sT2}, s{sROLE}, 2
        s_add_u32 s{sT2}, s{sT2}, s{sWAVE}
        s_lshr_b32 s{sT3}, s{sT2}, 1
        s_lshl_b32 s{sT3}, s{sT3}, 7
        s_add_u32 s{sT3}, s{sT3}, {F_ZERO}
        v_mov_b32 v34, s{sT3}
        """)
        self.phi(f, list(range(64, 96)), tmp, sL2E, sEPS)
        self.phi(f, list(range(96, 112)), tmp, sL2E, sEPS, mask=sMASK)
        chk_zero = self.poll(f, 35, 34)
        for t in range(5):
            a = 64 + 16*t
            for r in range(8):
                f(f"v_cvt_pk_bf16_f32 v{a+r}, v{a+2*r}, v{a+2*r+1}")
        f(f"""
        v_and_b32 v28, 31, v{vLANE}
        v_lshrrev_b32 v29, 5, v{vLANE}
        v_mul_u32_u24 v30, {PKV_P}, v28
        v_lshl_add_u32 v30, v29, 4, v30
        s_lshl_b32 s{sT3}, s{sWAVE}, 6
        v_add_u32 v12, s{sT3}, v30
        v_add_u32 v13, {64*PKV_P}, v12
        v_cndmask_b32_e64 v13, v13, v12, s[{sMASK}:{sMASK+1}]
        v_lshlrev_b32 v14, 2, v{vLANE}
        v_mov_b32 v15, 0x3f803f80
        v_lshlrev_b32 v16, 4, v0
        v_mov_b32 v192, 0
        v_mov_b32 v193, 0
        v_mov_b32 v194, 0
        v_mov_b32 v195, 0
        """)
        f.mark("pkv")
        for t, (vb, col) in enumerate(((12, 0), (12, 32), (13, 64), (12, 80), (12, 112))):
            for ks in range(2):
                f(f"ds_write_b128 v{vb}, {vr(64 + 16*t + 4*ks, 4)} offset:{PKV + col*PKV_P + ks*32}")
        f(f"ds_write_b32 v14, v15 offset:{PKV + 160*PKV_P}")
        for i in range(4):
            f(f"ds_write_b128 v16, v[192:195] offset:{KVL + i*4096}")
        c2m, rest = interleave(c2, f, self.o["fillq"])
        c2m.extend(rest)
        ib = next(i for i, x in enumerate(c2m) if x is bars[11]); ip = next(i for i, x in enumerate(c2m) if x.kind == "mark" and x.text == "pkv")
        assert ip > ib
        s = S(pre0); s.extend(c1); self.stamp(s, 1); s.extend(c2m)
        self.stamp(s, 2)
        s.wait_all(vm=False, lg=True)
        s("s_barrier")
        s(f"""
        s_mul_i32 s{sT0}, s{sWAVE}, 20
        v_min_u32 v30, 19, v28
        v_add_u32 v30, s{sT0}, v30
        v_mul_u32_u24 v30, {PKV_P}, v30
        v_lshl_add_u32 v12, v29, 4, v30
        v_add_u32 v30, {80*PKV_P}, v30
        v_mov_b32 v31, {160*PKV_P}
        v_cmp_gt_u32 vcc, 20, v28
        v_cndmask_b32 v30, v31, v30, vcc
        v_lshl_add_u32 v13, v29, 4, v30
        """)
        for i in range(8):
            s(f"ds_read_b128 {vr(64+8*i,4)}, v12 offset:{PKV + i*32}\nds_read_b128 {vr(68+8*i,4)}, v13 offset:{PKV + i*32}")
        self.a_setup(s)
        s(f"""
        s_mul_i32 s{sT3}, s{sT2}, 3072
        s_add_u32 s{sT3}, s{sT3}, {KVT_G}
        v_mov_b32 v31, {OOB}
        v_cmp_gt_u32 vcc, 22, v28
        v_cndmask_b32 v15, v31, v14, vcc
        v_cmp_gt_u32 vcc, 22, v{vLANE}
        v_cndmask_b32 v16, v31, v14, vcc
        """)
        for i in range(8):
            s(f"v_mfma_f32_32x32x16_bf16 v[128:143], {vr(64+8*i,4)}, {vr(68+8*i,4)}, {'0' if i == 0 else 'v[128:143]'}")
        chk_zero(s)
        at = None
        for r in range(12):
            at = s(f"buffer_atomic_add_f32 v{128+r}, v{15 if r < 8 else 16}, {srd(SWS)}, s{sT3} offen offset:{r*256}")
        for c in range(3):
            for t in self.a_dma(c): s.extend(t)
        self.stamp(s, 3)
        self.phi(s, list(range(144, 184)), tmp, sL2E, sEPS)
        PQ = 200
        for r in range(20):
            s(f"v_cvt_pk_bf16_f32 v{PQ+r}, v{144+2*r}, v{145+2*r}")
        s(f"""
        s_lshl_b32 s{sT4}, s{sT2}, 7
        s_add_u32 s{sT4}, s{sT4}, {F_KV}
        s_lshl_b32 s{sT5}, s{sRB}, 2
        s_add_u32 s{sT5}, s{sT5}, s{sT4}
        v_and_b32 v30, 15, v{vLANE}
        v_lshl_add_u32 v34, v30, 2, s{sT4}
        """)
        s.wait(at); self.flag(s, sT5)
        s(f"s_lshl_b32 s{sT4}, s{sRG}, 8\ns_add_u32 s{sT4}, s{sT4}, {GG}\nv_lshl_add_u32 v17, v28, 3, s{sT4}")
        gld = f"buffer_load_dwordx2 v[18:19], v17, {srd(SWS)}, 0 offen sc1"
        s(gld)
        chk = self.poll(s, 35, 34)
        s(f"""
        s_mul_i32 s{sT0}, s{sWAVE}, 20
        v_add_u32 v30, s{sT0}, v28
        v_subrev_u32 v31, 20, v28
        v_lshlrev_b32 v31, 2, v31
        s_add_u32 s{sT1}, s{sWAVE}, 80
        v_add_u32 v31, s{sT1}, v31
        v_cmp_gt_u32 vcc, 20, v28
        v_cndmask_b32 v30, v31, v30, vcc
        v_mul_u32_u24 v30, {KVL_P}, v30
        v_lshl_add_u32 v30, v29, 3, v30
        s_lshl_b32 s{sT0}, s{sT0}, 1
        s_add_u32 s{sT0}, s{sT0}, {KVL}
        v_add_u32 v30, s{sT0}, v30
        v_mov_b32 v31, {KVL_DUMMY}
        v_cmp_gt_u32 vcc, 22, v28
        v_cndmask_b32 v12, v31, v30, vcc
        v_cmp_gt_u32 vcc, 22, v{vLANE}
        v_cndmask_b32 v13, v31, v30, vcc
        v_mul_u32_u24 v30, {KVL_P}, v28
        v_lshl_add_u32 v30, v29, 3, v30
        v_add_u32 v20, {KVL}, v30
        v_add_u32 v21, {32*KVL_P}, v20
        v_add_u32 v22, {64*KVL_P}, v20
        """)
        self.check(s, gld, f"v_cmp_ne_u32 vcc, s{sTAG}, v19")
        chk(s)
        self.stamp(s, 4)
        for r in range(12):
            s(f"buffer_load_dword v{64+r}, v14, {srd(SWS)}, s{sT3} offen offset:{r*256} sc1")
        for r in range(6):
            s(f"v_cvt_pk_bf16_f32 v{64+r}, v{64+2*r}, v{65+2*r}")
        for g in range(3):
            s(f"ds_write_b64 v{13 if g == 2 else 12}, {vr(64+2*g,2)} offset:{g*16}")
        s.wait_all(vm=False, lg=True)
        s("s_barrier")
        plan = [(0, k) for k in (0, 1, 2)] + [(1, k) for k in (1, 2, 3, 4)] + [(2, k) for k in range(5)]
        plan = plan[7:] + plan[:7]
        for i, (T, k) in enumerate(plan):
            s(f"ds_read2_b64 {vr(64+4*i,4)}, v{20+T} offset0:{4*k} offset1:{4*k+2}")
        firsts = set()
        for i, (T, k) in enumerate(plan):
            acc = vr(144 + 16*T, 16)
            s(f"v_mfma_f32_32x32x16_bf16 {acc}, {vr(64+4*i,4)}, {vr(PQ+4*k,4)}, {acc if T in firsts else '0'}")
            firsts.add(T)
        s(f"""
        v_lshrrev_b32 v30, 4, v28
        s_lshl_b32 s{sT0}, s{sRG}, 1
        v_add_u32 v30, s{sT0}, v30
        v_mul_u32_u24 v30, {47*1024}, v30
        v_and_b32 v31, 15, v28
        v_lshl_add_u32 v31, v29, 4, v31
        v_lshl_add_u32 v30, v31, 4, v30
        s_lshr_b32 s{sT0}, s{sROLE}, 1
        s_mul_i32 s{sT0}, s{sT0}, 5120
        s_add_u32 s{sT0}, s{sT0}, {AF}
        s_and_b32 s{sT1}, s{sROLE}, 1
        s_mul_i32 s{sT4}, s{sT1}, 3072
        s_add_u32 s{sT4}, s{sT4}, s{sT0}
        s_lshl_b32 s{sT1}, s{sT1}, 3
        s_add_u32 s{sT5}, s{sT0}, s{sT1}
        s_add_u32 s{sT5}, s{sT5}, 2048
        v_cmp_lt_u32 vcc, 31, v{vLANE}
        """)
        INV = 192
        for h in range(4): s(f"v_add_f32 v{INV+h}, s{sEPS}, v{184+h}")
        for h in range(4): s(f"v_rcp_f32 v{INV+h}, v{INV+h}")
        for h in range(4): s(f"v_mul_f32 v{INV+h}, v{INV+h}, v18")
        s(f"v_cndmask_b32 v{INV+4}, v{INV}, v{INV+1}, vcc\nv_cndmask_b32 v{INV+5}, v{INV+2}, v{INV+3}, vcc")
        ost = None
        for T in (2, 0, 1):
            a = 144 + 16*T
            order = (0, 2, 1, 3) if T < 2 else (0, 1)
            p = 64 + 8*T
            for k, g in enumerate(order):
                q0 = 8*T + 2*g
                iv = INV + q0 // 5 if q0 // 5 == (q0 + 1) // 5 else INV + 4 + (q0 // 5) // 2
                for r in range(4): s(f"v_mul_f32 v{a+4*g+r}, v{a+4*g+r}, v{iv}")
                s(f"v_cvt_pk_bf16_f32 v{p+2*k}, v{a+4*g}, v{a+4*g+1}\nv_cvt_pk_bf16_f32 v{p+2*k+1}, v{a+4*g+2}, v{a+4*g+3}")
            for pc in range(2):
                if T < 2:
                    ost = s(f"buffer_store_dwordx4 {vr(p+4*pc,4)}, v30, {srd(SWS)}, s{sT4} offen offset:{T*1024 + pc*512} sc1")
                else:
                    ost = s(f"buffer_store_dwordx2 {vr(p+2*pc,2)}, v30, {srd(SWS)}, s{sT5} offen offset:{pc*512} sc1")
        s(f"s_lshl_b32 s{sT0}, s{sRG}, 5\ns_lshl_b32 s{sT1}, s{sROLE}, 2\ns_add_u32 s{sT0}, s{sT0}, s{sT1}\ns_add_u32 s{sT0}, s{sT0}, {F_O}")
        s.wait(ost); self.flag(s, sT0)
        self.stamp(s, 5)
        s("s_branch L_tail")
        return s

    def role_misc(self):
        s = S()
        s("L_misc:")
        self.load_tag(s)
        assert all((n*820) >> 16 == n // 80 for n in range(640))
        for j in range(10):
            s(f"""
            v_add_u32 v28, {64*j}, v{vLANE}
            v_mul_u32_u24 v29, 820, v28
            v_lshrrev_b32 v29, 16, v29
            v_mul_u32_u24 v30, 80, v29
            v_sub_u32 v28, v28, v30
            v_lshlrev_b32 v30, 1, v29
            v_xor_b32 v28, v28, v30
            v_mul_u32_u24 v29, 1280, v29
            v_lshl_add_u32 v{12+j}, v28, 4, v29
            """)
        sST = 92
        last = None
        for sl in range(3):
            st = sST + sl
            s(f"""
            s_add_u32 s{st}, s{sRB}, {16*sl}
            s_mul_i32 s{sT0}, s{st}, 13
            s_lshr_b32 s{sT0}, s{sT0}, 6
            s_mul_i32 s{sT1}, s{sT0}, 5
            s_sub_u32 s{sT1}, s{st}, s{sT1}
            s_mul_i32 s{sT0}, s{sT0}, 160
            s_lshl_b32 s{sT2}, s{sT1}, 5
            s_add_u32 s{sT0}, s{sT0}, s{sT2}
            s_cmp_ge_u32 s{sT1}, 3
            s_cselect_b32 s{sT2}, 16, 0
            s_sub_u32 s{sT0}, s{sT0}, s{sT2}
            s_cmp_ge_u32 s{sWAVE}, 2
            s_cselect_b32 s{sT2}, 64, 0
            s_cmp_eq_u32 s{sT1}, 2
            s_cselect_b32 s{sT2}, s{sT2}, 0
            s_add_u32 s{sT0}, s{sT0}, s{sT2}
            s_min_u32 s{sT1}, s{st}, 46
            s_sub_u32 s{sT1}, s{sT1}, 20
            s_lshl_b32 s{sT1}, s{sT1}, 5
            s_mov_b32 s{sT3}, {864*1280}
            s_cmp_lt_u32 s{st}, 20
            s_cselect_b32 s{sT0}, s{sT0}, s{sT1}
            s_cselect_b32 s{SW}, s{P_WO}, s{P_WOUT}
            s_cselect_b32 s{SW+1}, s{P_WO+1}, s{P_WOUT+1}
            s_cselect_b32 s{SW+2}, {640*1280}, s{sT3}
            s_lshl_b32 s{sT1}, s{sWAVE}, 3
            s_add_u32 s{sT0}, s{sT0}, s{sT1}
            s_mul_i32 s{sWO}, s{sT0}, 1280
            s_mul_i32 s{sWB}, s{sWAVE}, 10240
            """)
            for j in range(10):
                s(f"s_add_u32 m0, s{sWB}, {sl*40960 + j*1024}")
                last = s(f"buffer_load_dwordx4 v{12+j}, {srd(SW)}, s{sWO} offen lds")
        assert all((n*13) >> 6 == n // 5 for n in range(20))
        self.make_tag(s)
        s(f"""
        v_mov_b32 v32, 0
        v_mov_b32 v33, 0
        v_mov_b32 v34, 0
        v_mov_b32 v35, 0
        v_lshlrev_b32 v36, 4, v{vLANE}
        s_cmp_eq_u32 s{sWAVE}, 0
        s_cselect_b32 s{sT1}, 0, {OOB}
        v_add_u32 v37, s{sT1}, v36
        v_add_u32 v38, s{sT1}, v{vL0}
        s_mul_i32 s{sT0}, s{sRB}, 6144
        s_add_u32 s{sT0}, s{sT0}, {KVT_G}
        s_add_u32 s{sT1}, s{sT0}, 4096
        """)
        for i in range(6):
            z = s(f"buffer_store_dwordx4 v[32:35], v37, {srd(SWS)}, s{sT0 if i < 4 else sT1} offen offset:{(i & 3)*1024} sc1")
        s(f"""
        v_and_b32 v28, 15, v{vLANE}
        v_lshrrev_b32 v29, 4, v{vLANE}
        v_lshlrev_b32 v30, 4, v28
        s_lshl_b32 s{sT2}, s{sRG}, 5
        v_add_u32 v29, s{sT2}, v29
        v_mul_u32_u24 v31, 1280, v29
        v_add_u32 v31, v31, v30
        """)
        GW, XB = 40, 64
        for i in range(5):
            s(f"buffer_load_dwordx4 {vr(GW+4*i,4)}, v30, {srd(SGW)}, 0 offen offset:{i*256}")
        s(f"s_lshl_b32 s{sT2}, s{sRB}, 7\ns_add_u32 s{sT2}, s{sT2}, {F_ZERO}")
        s.wait(z)
        s(f"buffer_store_dword v{vTAG}, v38, {srd(SWS)}, s{sT2} offen sc1")
        for grp in range(8):
            s(f"s_mov_b32 s{sT2}, {grp*4*1280}")
            for i in range(5):
                s(f"buffer_load_dwordx4 {vr(XB+20*grp+4*i,4)}, v31, {srd(SX)}, s{sT2} offen offset:{i*256}")
        ACC = 224
        for grp in range(8):
            s(f"v_mov_b32 v{ACC+grp}, 0")
        for i in range(20):
            for grp in range(8):
                s(f"v_dot2_f32_bf16 v{ACC+grp}, v{XB+20*grp+i}, v{GW+i}, v{ACC+grp}")
        for sh in (8, 4, 2, 1):
            for grp in range(8):
                s(f"v_add_f32_dpp v{ACC+grp}, v{ACC+grp}, v{ACC+grp} row_ror:{sh} row_mask:0xf bank_mask:0xf")
        for grp in range(8): s(f"v_mul_f32 v{ACC+grp}, {f32(-LOG2E)}, v{ACC+grp}")
        for grp in range(8): s(f"v_exp_f32 v{ACC+grp}, v{ACC+grp}")
        for grp in range(8): s(f"v_add_f32 v{ACC+grp}, 1.0, v{ACC+grp}")
        for grp in range(8): s(f"v_rcp_f32 v{64+2*grp}, v{ACC+grp}\nv_mov_b32 v{65+2*grp}, v{vTAG}")
        s(f"""
        v_lshlrev_b32 v29, 3, v29
        v_add_u32 v29, {GG}, v29
        v_mov_b32 v30, {OOB}
        v_cmp_eq_u32 vcc, 0, v28
        v_cndmask_b32 v29, v30, v29, vcc
        """)
        for grp in range(8):
            s(f"buffer_store_dwordx2 {vr(64+2*grp,2)}, v29, {srd(SWS)}, 0 offen offset:{grp*32} sc1")
        s.wait(last)
        s("s_barrier")
        s(f"""
        v_lshrrev_b32 v28, 2, v{vLANE}
        v_and_b32 v29, 7, v28
        v_lshlrev_b32 v29, 5, v29
        v_mul_u32_u24 v28, 1280, v28
        v_and_b32 v30, 3, v{vLANE}
        v_lshl_add_u32 v28, v30, 3, v28
        v_add_u32 v28, v28, v29
        s_mul_i32 s{sT0}, s{sWAVE}, 10
        """)
        for i in range(10):
            s(f"""
            s_add_u32 s{sT1}, s{sT0}, {i}
            s_and_b32 s{sT2}, s{sT1}, 7
            s_lshl_b32 s{sT2}, s{sT2}, 5
            s_lshr_b32 s{sT1}, s{sT1}, 3
            s_lshl_b32 s{sT1}, s{sT1}, 8
            v_xor_b32 v{12+i}, s{sT2}, v28
            v_add_u32 v{12+i}, s{sT1}, v{12+i}
            """)
        rst = None
        for sl in range(3):
            b0 = 96 + 40*sl
            for i in range(10):
                off = 40960 if sl == 1 else 0
                s(f"ds_read_b64_tr_b16 {vr(b0+4*i,2)}, v{12+i} offset:{off}\nds_read_b64_tr_b16 {vr(b0+4*i+2,2)}, v{12+i} offset:{off+20480}")
                if sl == 1: s(f"v_add_u32 v{12+i}, 81920, v{12+i}")
            s(f"""
            s_mul_i32 s{sT1}, s{sST+sl}, 40
            s_add_u32 s{sT1}, s{sT1}, s{sT0}
            s_lshl_b32 s{sT1}, s{sT1}, 10
            s_add_u32 s{sT1}, s{sT1}, {WF}
            s_cmp_lt_u32 s{sST+sl}, 47
            s_cselect_b32 s{sT2}, 0, {OOB}
            v_add_u32 v37, s{sT2}, v36
            """)
            for i in range(10):
                if i in (4, 8): s(f"s_add_u32 s{sT1}, s{sT1}, 4096")
                rst = s(f"buffer_store_dwordx4 {vr(b0+4*i,4)}, v37, {srd(SWS)}, s{sT1} offen offset:{(i & 3)*1024} sc1")
        s.wait_all(vm=False, lg=True)
        s("s_barrier")
        self.a_setup(s)
        s(f"s_lshl_b32 s{sT2}, s{sRG}, 2\ns_add_u32 s{sT2}, s{sT2}, {F_REP}")
        s.wait(rst); self.flag(s, sT2)
        for c in range(3):
            for t in self.a_dma(c): s.extend(t)
        self.stamp(s, 5)
        return s

    def tail(self):
        s = S()
        s("L_tail:")
        ACC, BB = 16, 128
        vB0, vB1, vB2, vP, vPA, vL16 = 8, 9, 10, 11, 12, 13
        s(f"""
        s_lshr_b32 s{sT0}, s{sFG}, 1
        s_and_b32 s{sT1}, s{sFG}, 1
        s_mul_i32 s{sT2}, s{sT0}, 14
        s_cmp_lt_u32 s{sFG}, 6
        s_cselect_b32 s{sT3}, 8, 6
        s_cselect_b32 s{sT5}, 0, {OOB}
        s_mul_i32 s{sT3}, s{sT3}, s{sT1}
        s_add_u32 s{sFT0}, s{sT2}, s{sT3}
        s_add_u32 s{sFT6}, s{sT2}, 6
        s_add_u32 s{sFT6}, s{sFT6}, s{sT1}
        s_cmp_lt_u32 s{sFG}, 6
        s_cselect_b32 s{sFT6}, s{sFT6}, s{sFT0}
        v_lshlrev_b32 v{vL16}, 4, v{vLANE}
        s_mul_i32 s{sT2}, s{sWAVE}, {16*54}
        s_add_u32 s{sT3}, s{sT2}, s{sFT0}
        s_lshl_b32 s{sT3}, s{sT3}, 10
        s_add_u32 s{sT3}, s{sT3}, {Z2F}
        v_add_u32 v{vB0}, s{sT3}, v{vL16}
        v_add_u32 v{vB1}, 4096, v{vB0}
        s_add_u32 s{sT3}, s{sT2}, s{sFT6}
        s_lshl_b32 s{sT3}, s{sT3}, 10
        s_add_u32 s{sT3}, s{sT3}, {Z2F}
        s_add_u32 s{sT3}, s{sT3}, s{sT5}
        v_add_u32 v{vB2}, s{sT3}, v{vL16}
        s_min_u32 s{sT2}, s{sFT0}, s{sFT6}
        s_add_u32 s{sT3}, s{sFT0}, 5
        s_max_u32 s{sT3}, s{sT3}, s{sFT6}
        s_lshr_b32 s92, s{sT2}, 3
        s_lshr_b32 s93, s{sT3}, 3
        s_add_u32 s{sT2}, s{sT2}, 2
        s_add_u32 s{sT3}, s{sT3}, 2
        s_lshr_b32 s{sT2}, s{sT2}, 3
        s_lshr_b32 s{sT3}, s{sT3}, 3
        s_sub_u32 s{sT3}, s{sT3}, s{sT2}
        s_lshl_b32 s{sT3}, s{sT3}, 8
        s_lshl_b32 s{sT2}, s{sT2}, 8
        s_lshl_b32 s{sT4}, s{sWAVE}, 6
        s_add_u32 s{sT2}, s{sT2}, s{sT4}
        s_add_u32 s{sT2}, s{sT2}, {F_Z2}
        v_bfe_u32 v14, v{vLANE}, 4, 1
        v_mul_u32_u24 v14, s{sT3}, v14
        v_and_b32 v15, 15, v{vLANE}
        v_lshl_add_u32 v14, v15, 2, v14
        v_add_u32 v{vPA}, s{sT2}, v14
        """)
        s.wait_all(vm=True, lg=False)
        rd = {}
        dm = {}
        for c in range(3):
            rd[c] = self.a_read(s, c)
        chk = None
        for c in range(3, 8):
            if c >= 6:
                s.wait(dm[c-3]); rd[c-3] = self.a_read(s, c - 3)
            s.wait(rd[c-3])
            for t in self.a_dma(c): s.extend(t)
            dm[c] = s[-1]
        chk = self.poll(s, vP, vPA)
        for c in range(5, 8):
            s.wait(dm[c]); rd[c] = self.a_read(s, c)
        self.stamp(s, 6)
        chk(s)
        self.stamp(s, 7)
        sBO = sWO
        def b_load(ks, j):
            t = S()
            if j == 0: t(f"s_mov_b32 s{sBO}, {ks*54*1024}")
            va, off = (vB0, j*1024) if j < 4 else ((vB1, (j-4)*1024) if j < 6 else (vB2, 0))
            t(f"buffer_load_dwordx4 {vr(BB + 28*(ks % 4) + 4*j, 4)}, v{va}, {srd(SWS)}, s{sBO} offen offset:{off} sc1")
            return t
        for ks in range(4):
            for j in range(7): s.extend(b_load(ks, j))
        vWF, vWF1, vWFx, vWFx1 = 240, 241, 242, 243
        vAF = 244
        vZ1, vZ6, vGA = 248, 249, 250
        vG, vBS = 14, 251
        s(f"""
        s_lshr_b32 s{sPM0}, s{sFT0}, 1
        s_lshr_b32 s{sPM6}, s{sFT6}, 1
        s_lshl_b32 s{sPM0}, s{sPM0}, 10
        s_lshl_b32 s{sPM6}, s{sPM6}, 10
        s_and_b32 s{sT0}, s{sFT6}, 1
        s_lshl_b32 s{sT0}, s{sT0}, 3
        s_add_u32 s{sPM6}, s{sPM6}, s{sT0}
        s_add_u32 s{sPM6}, s{sPM6}, s{sT5}
        s_lshl_b32 s{sT0}, s{sTB}, 2
        s_add_u32 s{sT0}, s{sT0}, s{sWAVE}
        v_add_u32 v{vZ1}, s{sPM0}, v{vL16}
        v_add_u32 v{vZ6}, s{sPM6}, v{vL16}
        s_mul_i32 s{sPM0}, s{sT0}, {27*1024}
        s_add_u32 s{sPM0}, s{sPM0}, {Z1F}
        s_mul_i32 s{sPM6}, s{sT0}, {47*1024}
        s_add_u32 s{sPM6}, s{sPM6}, {AF + 20*1024}
        s_lshl_b32 s{sT1}, s{sT0}, 4
        v_and_b32 v252, 15, v{vLANE}
        v_add_u32 v252, s{sT1}, v252
        v_lshlrev_b32 v{vGA}, 3, v252
        v_add_u32 v{vGA}, {GG}, v{vGA}
        v_lshlrev_b32 v252, 1, v252
        buffer_load_ushort v{vBS}, v252, {srd(SBS)}, 0 offen
        s_mul_i32 s{sT1}, s{sNG}, 5120
        s_add_u32 s{sT1}, s{sT1}, {WF}
        v_add_u32 v{vWF}, s{sT1}, v{vL16}
        v_add_u32 v{vWF1}, 4096, v{vWF}
        s_cmp_eq_u32 s{sWAVE}, 3
        s_cselect_b32 s{sT4}, {OOB}, 0
        v_add_u32 v{vWFx}, s{sT4}, v{vWF}
        v_add_u32 v{vWFx1}, s{sT4}, v{vWF1}
        """)
        for m in range(4):
            s(f"""
            s_add_u32 s{sT1}, s{sWAVE}, {m}
            s_and_b32 s{sT1}, s{sT1}, 3
            s_lshl_b32 s{sT2}, s{sTB}, 2
            s_add_u32 s{sT1}, s{sT1}, s{sT2}
            s_mul_i32 s{sT1}, s{sT1}, {47*1024}
            s_add_u32 s{sT1}, s{sT1}, {AF}
            v_add_u32 v{vAF+m}, s{sT1}, v{vL16}
            """)
        s(f"""
        s_lshr_b32 s{sT0}, s{sT0}, 1
        s_lshl_b32 s{sT0}, s{sT0}, 2
        s_add_u32 s{sT0}, s{sT0}, {F_Z1}
        s_lshl_b32 s92, s92, 8
        s_lshl_b32 s93, s93, 8
        s_add_u32 s92, s92, s{sT0}
        s_add_u32 s93, s93, s{sT0}
        s_lshl_b32 s{sT1}, s{sTB}, 6
        s_lshl_b32 s{sT2}, s{sWAVE}, 3
        s_add_u32 s{sT1}, s{sT1}, s{sT2}
        s_add_u32 s{sT1}, s{sT1}, {F_O}
        v_bfe_u32 v252, v{vLANE}, 1, 1
        v_and_b32 v253, 1, v{vLANE}
        v_lshlrev_b32 v253, 2, v253
        v_lshl_add_u32 v252, v252, 5, v253
        v_add_u32 v{vPA}, s{sT1}, v252
        v_mov_b32 v252, s92
        v_mov_b32 v253, s93
        v_cmp_eq_u32 vcc, 4, v{vLANE}
        v_cndmask_b32 v{vPA}, v{vPA}, v252, vcc
        v_cmp_eq_u32 vcc, 5, v{vLANE}
        v_cndmask_b32 v{vPA}, v{vPA}, v253, vcc
        v_lshlrev_b32 v252, 2, v{vLANE}
        v_add_u32 v252, {F_REP}, v252
        s_mul_i32 s92, s{sWAVE}, {5*40*1024}
        s_mul_i32 s93, s{sWAVE}, {7*40*1024}
        s_add_u32 s93, s93, {20*40*1024}
        s_mul_i32 s94, s{sWAVE}, {5*1024}
        s_mul_i32 s95, s{sWAVE}, {7*1024}
        s_add_u32 s95, s95, {20*1024}
        """)
        def wf_load(si, nt):
            t = S()
            if nt == 0:
                t(f"s_add_u32 s{sXO}, s{92 if si < 5 else 93}, {(si if si < 5 else si - 5)*40*1024}")
            x = si == 11
            va, off = ((vWFx if x else vWF), nt*1024) if nt < 4 else ((vWFx1 if x else vWF1), 0)
            t(f"buffer_load_dwordx4 {ar((si*5 + nt)*4, 4)}, v{va}, {srd(SWS)}, s{sXO} offen offset:{off} sc1")
            return t
        def af_load(si, m, dst):
            t = S()
            if m == 0:
                t(f"s_add_u32 s{sT0}, s{94 if si < 5 else 95}, {(si if si < 5 else si - 5)*1024}")
            if si == 11: t(f"v_add_u32 v{vAF+m}, s{sT4}, v{vAF+m}")
            t(f"buffer_load_dwordx4 {vr(dst, 4)}, v{vAF+m}, {srd(SWS)}, s{sT0} offen sc1")
            return t
        Z1R = 208
        late = []
        for p in range(3):
            t = S(); t(f"buffer_load_dwordx4 {vr(Z1R+4*p,4)}, v{vZ1}, {srd(SWS)}, s{sPM0} offen offset:{p*1024} sc1"); late.append(t)
        t = S(); t(f"buffer_load_dwordx2 {vr(Z1R+12,2)}, v{vZ6}, {srd(SWS)}, s{sPM0} offen sc1"); late.append(t)
        wfq = [wf_load(si, nt) for si in range(5) for nt in range(5)]
        gld = f"buffer_load_dwordx2 {vr(vG,2)}, v{vGA}, {srd(SWS)}, 0 offen sc1"
        for ks in range(16):
            if ks == 6:
                c1 = self.poll(s, vP, vPA); c2 = self.poll(s, 253, 252); s(gld)
            if ks == 11:
                c1(s); c2(s); self.check(s, gld, f"v_cmp_ne_u32 vcc, s{sTAG}, v{vG+1}")
            for j in range(7):
                for m in range(4):
                    acc = vr(ACC + 28*m + 4*j, 4)
                    s(f"v_mfma_f32_16x16x32_bf16 {acc}, {vr(BB + 28*(ks % 4) + 4*j, 4)}, {ar(16*ks + 4*m, 4)}, {acc if ks else '0'}")
                if ks + 4 < 16: s.extend(b_load(ks + 4, j))
                elif wfq: s.extend(wfq.pop(0))
        self.stamp(s, 8)
        for t in late: s.extend(t)
        vRW, vRR = 4, 7
        def red_setup(per):
            for m in range(1, 4):
                s(f"s_add_u32 s{sT1}, s{sWAVE}, {m}\ns_and_b32 s{sT1}, s{sT1}, 3\ns_mul_i32 s{sT1}, s{sT1}, {3*per*1024}\ns_add_u32 s{sT1}, s{sT1}, {(m-1)*per*1024}\nv_add_u32 v{vRW+m-1}, s{sT1}, v{vL16}")
            s(f"s_mul_i32 s{sT1}, s{sWAVE}, {3*per*1024}\nv_add_u32 v{vRR}, s{sT1}, v{vL16}")
        def reduce(acc, per, extra):
            n = 4*per
            for m in range(1, 4):
                for j in range(per):
                    s(f"ds_write_b128 v{vRW+m-1}, {vr(acc + n*m + 4*j, 4)} offset:{j*1024}")
                    if extra: s.extend(extra.pop(0))
            s.wait_all(vm=False, lg=True)
            s("s_barrier")
            for j in range(per):
                for m in range(1, 4):
                    s(f"ds_read_b128 {vr(acc + n*m + 4*j, 4)}, v{vRR} offset:{((m-1)*per + j)*1024}")
            for j in range(per):
                for m in range(1, 4):
                    for h in range(2):
                        a = acc + 4*j + 2*h
                        s(f"v_pk_add_f32 {vr(a,2)}, {vr(a,2)}, {vr(a + n*m, 2)}")
        red_setup(7)
        s("s_barrier")
        oq = [af_load(si, m, BB + 16*si + 4*m) for si in range(5) for m in range(4)]
        reduce(ACC, 7, oq)
        for t in oq: s.extend(t)
        s(f"""
        v_sub_f32 v{vG}, 1.0, v{vG}
        v_lshlrev_b32 v{vBS}, 16, v{vBS}
        v_mul_f32 v{vBS}, v{vBS}, v{vG}
        """)
        T0 = 224
        ust = None
        for j in range(7):
            a = ACC + 4*j; z = Z1R + 2*j
            for r in range(4): s(f"v_fma_f32 v{a+r}, v{a+r}, v{vG}, v{vBS}")
            s(f"v_lshlrev_b32 v{T0}, 16, v{z}\nv_and_b32 v{T0+1}, 0xffff0000, v{z}\nv_lshlrev_b32 v{T0+2}, 16, v{z+1}\nv_and_b32 v{T0+3}, 0xffff0000, v{z+1}")
            for r in range(4): s(f"v_mul_f32 v{a+r}, v{a+r}, v{T0+r}")
            s(f"v_cvt_pk_bf16_f32 v{z}, v{a}, v{a+1}\nv_cvt_pk_bf16_f32 v{z+1}, v{a+2}, v{a+3}")
            if j in (1, 3, 5):
                ust = s(f"buffer_store_dwordx4 {vr(z-2,4)}, v{vZ1}, {srd(SWS)}, s{sPM6} offen offset:{(j//2)*1024} sc1")
            if j == 6:
                ust = s(f"buffer_store_dwordx2 {vr(z,2)}, v{vZ6}, {srd(SWS)}, s{sPM6} offen sc1")
        self.stamp(s, 9)
        s(f"""
        s_lshl_b32 s{sT1}, s{sTB}, 7
        s_add_u32 s{sT1}, s{sT1}, {F_U}
        s_lshl_b32 s{sT2}, s{sFG}, 4
        s_lshl_b32 s{sT3}, s{sWAVE}, 2
        s_add_u32 s{sT2}, s{sT2}, s{sT3}
        s_add_u32 s{sT2}, s{sT2}, s{sT1}
        s_lshl_b32 s{sT3}, s{sWAVE}, 5
        s_add_u32 s{sT1}, s{sT1}, s{sT3}
        v_and_b32 v252, 7, v{vLANE}
        v_lshl_add_u32 v{vPA}, v252, 2, s{sT1}
        """)
        A2 = 44
        def mm(si, src):
            t = S()
            for m in range(4):
                for nt in range(5):
                    acc = vr(A2 + 20*m + 4*nt, 4)
                    t(f"v_mfma_f32_16x16x32_bf16 {acc}, {ar((si*5 + nt)*4, 4)}, {vr(src + 4*m, 4)}, {acc if si else '0'}")
            return t
        d = S()
        for si in range(5): d.extend(mm(si, BB + 16*si))
        wq = [wf_load(si, nt) for si in range(5, 12) for nt in range(5)]
        fl = S(); fl.wait(ust); self.flag(fl, sT2)
        wq.insert(14, fl)
        dm_, wq = spread(d, wq, 8)
        s.extend(dm_)
        for t in wq: s.extend(t)
        chk = self.poll(s, vP, vPA)
        self.stamp(s, 10)
        chk(s)
        self.stamp(s, 11)
        for si in range(5, 12):
            for m in range(4): s.extend(af_load(si, m, BB + 16*(si - 5) + 4*m))
        red_setup(5)
        s(f"""
        s_lshl_b32 s{sT0}, s{sTB}, 2
        s_add_u32 s{sT0}, s{sT0}, s{sWAVE}
        s_mul_i32 s{sT0}, s{sT0}, {16*1280}
        s_mul_i32 s{sT1}, s{sNG}, 160
        s_add_u32 s{sT5}, s{sT0}, s{sT1}
        v_and_b32 v252, 15, v{vLANE}
        v_mul_u32_u24 v252, 1280, v252
        v_lshrrev_b32 v253, 4, v{vLANE}
        v_lshl_add_u32 v252, v253, 3, v252
        """)
        s("s_barrier")
        for si in range(5, 12): s.extend(mm(si, BB + 16*(si - 5)))
        self.stamp(s, 12)
        reduce(A2, 5, [])
        for nt in range(5):
            a = A2 + 4*nt
            s(f"v_cvt_pk_bf16_f32 v{a}, v{a}, v{a+1}\nv_cvt_pk_bf16_f32 v{a+1}, v{a+2}, v{a+3}")
            s(f"buffer_store_dwordx2 {vr(a,2)}, v252, {srd(SOUT)}, s{sT5} offen offset:{nt*32}")
        s(f"""
        s_or_b32 s{sT0}, s2, s{sWAVE}
        s_cmp_eq_u32 s{sT0}, 0
        s_cselect_b32 s{sT0}, 0, {OOB}
        s_add_u32 s{sT0}, s{sT0}, {EPOCH}
        v_add_u32 v252, s{sT0}, v{vL0}
        buffer_store_dword v{vTAG}, v252, {srd(SWS)}, 0 offen sc1
        """)
        self.stamp(s, 13)
        s("L_end:\ns_endpgm")
        return s

    def build(self):
        parts = [self.prologue(), self.role_z(), self.role_qkv(), self.role_misc(), self.tail()]
        body = "".join(text_of(finish(p)) for p in parts)
        body += "".join(text_of(finish(r)) for r in self.retry)
        head = open("gated_mix__linear_attn_block__mixer_gmlp__prompt.s.ref").read().split("; Override launch")[0]
        return (head + f"; @launch grid=(256,1,1) block=(256,1,1) lds={LDS_BYTES}\n"
                '.amdgcn_target "amdgcn-amd-amdhsa--gfx950"\n.text\n'
                f".globl {KNAME}\n.p2align 8\n.type {KNAME},@function\n{KNAME}:\n" + body +
                "L_code_end:\n  s_endpgm\n"
                '.section .rodata,"a"\n.p2align 6\n'
                f".amdhsa_kernel {KNAME}\n"
                "  .amdhsa_next_free_vgpr 512\n  .amdhsa_next_free_sgpr 102\n  .amdhsa_accum_offset 256\n"
                "  .amdhsa_group_segment_fixed_size 0\n  .amdhsa_kernarg_size 96\n  .amdhsa_user_sgpr_count 2\n"
                "  .amdhsa_user_sgpr_kernarg_segment_ptr 1\n  .amdhsa_system_sgpr_workgroup_id_x 1\n"
                "  .amdhsa_float_denorm_mode_32 3\n"
                ".end_amdhsa_kernel\n")


if __name__ == "__main__":
    out = sys.argv[1]
    opt = {}
    for a in sys.argv[2:]:
        k, v = a.split("=")
        opt[k] = eval(v)
    open(out, "w").write(Gen(**opt).build())
```

```python
import math, struct, sys
from asmlib import *

KNAME = "gated_mix__linear_attn_block__mixer_gmlp__prompt_kernel"

Z2F = 0x0001000
Z1F = 0x0400000
AF  = 0x0800000
WF  = 0x1000000
KVT_G = 0x1200000
ST  = 0x1240000
GG  = 0x12C0000
FL  = 0x12D0000
F_ZERO, F_REP, F_Z2, F_Z1, F_KV, F_O, F_U, EPOCH = (FL + k * 0x1000 for k in (0, 1, 2, 3, 4, 5, 6, 8))
STAMP = 0x1400000
WS_BYTES = 0x2000000
OOB = 0x40000000
TAG_INC = 0x9E3779B1

XR = 0
WR = 65536
PKV, PKV_P = 0, 272
KVL, KVL_P = 44032, 168
KVL_DUMMY = 60416
TB_P = 272
AST = 65536
LDS_BYTES = 163840

SX, SW, SWS, SSP, SOUT, SBS, SGW = 4, 8, 12, 16, 20, 24, 28
P_X, P_WQKV, P_WO, P_WIN, P_WSP, P_BSP, P_WOUT, P_GW, P_OUT, P_DBG, P_WS = 36, 38, 40, 44, 46, 48, 50, 52, 54, 56, 58
sWAVE, sRB, sROLE, sTAG, sTB, sFG, sNG, sRSEL = 60, 61, 62, 63, 64, 65, 66, 67
sRG = 68
sCNT = 69
sROW = 70
sAB, sT0, sT1, sT2, sT3, sT4, sT5 = 74, 75, 76, 77, 78, 79, 80
sXB, sWB, sXO, sWO = 81, 82, 83, 84
sFT0, sFT6, sPM0, sPM6 = 85, 86, 87, 88
sSTAMP = 98

vTID, vLANE, vTAG, vL0 = 0, 1, 2, 3

def srd(n): return f"s[{n}:{n+3}]"
def vr(a, n): return f"v[{a}:{a+n-1}]" if n > 1 else f"v{a}"
def ar(a, n): return f"a[{a}:{a+n-1}]"
def f32(x): return "0x%08x" % struct.unpack("<I", struct.pack("<f", x))[0]

LOG2E = math.log2(math.e)
GC1 = -2.0 * LOG2E * math.sqrt(2.0 / math.pi)
GC2 = GC1 * 0.044715


class Gen:
    def __init__(self, **opt):
        self.o = dict(spin=1 << 20, stamps=False, R=6, fillz=3.0, fillq=3.0)
        self.o.update(opt)
        self.retry = []
        self.nlabel = 0

    def stamp(self, s, idx):
        if not self.o["stamps"]:
            return
        s(f"{'s_memtime' if self.o['stamps'] == 2 else 's_memrealtime'} s[{sSTAMP}:{sSTAMP+1}]")
        if self.o["stamps"] == 3:
            s(f"s_or_b32 s{sSTAMP+2}, s2, s{sWAVE}\ns_cmp_eq_u32 s{sSTAMP+2}, 0\ns_cselect_b32 s{sSTAMP+2}, 0, {OOB}")
            s(f"v_add_u32 v254, s{sSTAMP+2}, v{vL0}\nv_mov_b32 v255, s{sSTAMP}")
            s(f"buffer_store_dword v255, v254, s[32:35], 0 offen offset:{4*idx}")
            return
        s(f"s_lshl_b32 s{sSTAMP+2}, s2, 2\ns_add_u32 s{sSTAMP+2}, s{sSTAMP+2}, s{sWAVE}\ns_lshl_b32 s{sSTAMP+2}, s{sSTAMP+2}, 7")
        s(f"s_add_u32 s{sSTAMP+2}, s{sSTAMP+2}, {STAMP + 4*idx}")
        s(f"v_mov_b32 v255, s{sSTAMP}")
        s(f"buffer_store_dword v255, v{vL0}, {srd(SWS)}, s{sSTAMP+2} offen")

    def flag(self, s, soff):
        return s(f"buffer_store_dword v{vTAG}, v{vL0}, {srd(SWS)}, s{soff} offen sc1")

    def check(self, s, loads, test):
        k = self.nlabel; self.nlabel += 1
        s(test)
        s.glue()
        s(f"s_cbranch_vccnz L_retry{k}")
        s.glue()
        s(f"L_back{k}:")
        r = S()
        r(f"L_retry{k}:\ns_mov_b32 s{sCNT}, 0\nL_loop{k}:\ns_sleep 4")
        r(loads)
        r.wait_all(vm=True, lg=False)
        r(test)
        r(f"s_add_u32 s{sCNT}, s{sCNT}, 1\ns_cmp_gt_u32 s{sCNT}, {self.o['spin']}\ns_cbranch_scc1 L_back{k}\ns_cbranch_vccnz L_loop{k}\ns_branch L_back{k}")
        self.retry.append(r)

    def poll(self, s, vdst, vaddr):
        ld = f"buffer_load_dword v{vdst}, v{vaddr}, {srd(SWS)}, 0 offen sc1"
        s(ld)
        return lambda t: self.check(t, ld, f"v_cmp_ne_u32 vcc, s{sTAG}, v{vdst}")

    def gelu(self, s, regs, tmp, c1, c2, stats=None):
        for i in range(0, len(regs), 4):
            g = list(zip(regs[i:i+4], tmp))
            for x, t in g: s(f"v_mul_f32 v{t}, v{x}, v{x}")
            for x, t in g: s(f"v_fma_f32 v{t}, v{t}, v{c2}, v{c1}")
            for x, t in g: s(f"v_mul_f32 v{t}, v{t}, v{x}")
            for x, t in g: s(f"v_exp_f32 v{t}, v{t}")
            for x, t in g: s(f"v_add_f32 v{t}, 1.0, v{t}")
            for x, t in g: s(f"v_rcp_f32 v{t}, v{t}")
            for x, t in g: s(f"v_mul_f32 v{x}, v{x}, v{t}")
            if stats:
                for x, t in g:
                    s(f"v_add_f32 v{stats[0]}, v{stats[0]}, v{x}")
                    s(f"v_fmac_f32 v{stats[1]}, v{x}, v{x}")

    def phi(self, s, regs, tmp, sl2e, seps, mask=None):
        for i in range(0, len(regs), 4):
            g = list(zip(regs[i:i+4], tmp[:4], tmp[4:8]))
            for x, t, u in g: s(f"v_mul_f32 v{t}, s{sl2e}, v{x}")
            for x, t, u in g: s(f"v_exp_f32_e64 v{t}, v{t} clamp")
            if mask is None:
                for x, t, u in g: s(f"v_max_f32 v{x}, s{seps}, v{x}")
                for x, t, u in g: s(f"v_add_f32 v{x}, v{x}, v{t}")
            else:
                for x, t, u in g: s(f"v_max_f32 v{u}, s{seps}, v{x}")
                for x, t, u in g: s(f"v_add_f32 v{u}, v{u}, v{t}")
                for x, t, u in g: s(f"v_cndmask_b32_e64 v{x}, v{x}, v{u}, s[{mask}:{mask+1}]")

    def prologue(self):
        s = S()
        s(f"""
        s_cmp_ge_u32 s2, 256
        s_cbranch_scc1 L_end
        s_load_dwordx16 s[36:51], s[0:1], 0
        s_load_dwordx8 s[52:59], s[0:1], 64
        s_getpc_b64 s[32:33]
        L_pc:
        s_lshr_b32 s3, s2, 3
        s_and_b32 s{sT0}, s3, 1
        s_lshl_b32 s{sT0}, s{sT0}, 15
        v_lshlrev_b32 v254, 7, v0
        v_add_u32 v254, s{sT0}, v254
        s_mov_b32 s{sT1}, L_code_end-L_pc-4
        v_min_u32 v254, s{sT1}, v254
        global_load_dword v253, v254, s[32:33]
        v_lshrrev_b32 v4, 6, v0
        v_and_b32 v{vLANE}, 63, v0
        s_and_b32 s{sT0}, s2, 7
        v_readfirstlane_b32 s{sWAVE}, v4
        s_and_b32 s{sT1}, s{sT0}, 1
        s_lshr_b32 s{sT2}, s{sT0}, 1
        s_and_b32 s{sT3}, s3, 7
        s_lshr_b32 s{sRSEL}, s3, 3
        s_lshl_b32 s{sRB}, s{sT1}, 3
        s_add_u32 s{sRB}, s{sRB}, s{sT3}
        s_lshl_b32 s{sROLE}, s{sT2}, 1
        s_and_b32 s{sT4}, s{sRSEL}, 1
        s_add_u32 s{sROLE}, s{sROLE}, s{sT4}
        s_lshl_b32 s{sTB}, s{sT2}, 3
        s_add_u32 s{sTB}, s{sTB}, s{sT3}
        s_lshl_b32 s{sNG}, s{sT1}, 2
        s_add_u32 s{sNG}, s{sNG}, s{sRSEL}
        s_mul_i32 s{sFG}, s{sT1}, 3
        s_add_u32 s{sFG}, s{sFG}, s{sRSEL}
        s_sub_u32 s{sFG}, s{sFG}, 1
        s_add_u32 s{sT4}, s{sT1}, 6
        s_cmp_eq_u32 s{sRSEL}, 0
        s_cselect_b32 s{sFG}, s{sT4}, s{sFG}
        s_lshl_b32 s{sRG}, s{sRB}, 2
        s_add_u32 s{sRG}, s{sRG}, s{sWAVE}
        v_cmp_eq_u32 vcc, 0, v{vLANE}
        v_mov_b32 v5, {OOB}
        v_cndmask_b32_e64 v{vL0}, v5, 0, vcc
        """)
        s(f"""
        v_lshrrev_b32 v8, 3, v{vLANE}
        v_and_b32 v9, 7, v{vLANE}
        v_lshrrev_b32 v10, 4, v{vLANE}
        v_xor_b32 v9, v9, v10
        v_lshlrev_b32 v9, 4, v9
        s_lshl_b32 s{sT0}, s{sRG}, 5
        v_add_u32 v8, s{sT0}, v8
        v_mul_u32_u24 v8, 1280, v8
        v_add_u32 v4, v8, v9
        v_xor_b32 v9, 64, v9
        v_add3_u32 v5, v8, v9, 0
        v_add_u32 v5, {10240-1024}, v5
        v_add_u32 v6, {2*(10240-1024)}, v4
        v_add_u32 v7, {2*(10240-1024)}, v5
        s_lshl_b32 s{sXB}, s{sWAVE}, 12
        """)
        for n, p, size in ((SX, P_X, 2048*1280), (SWS, P_WS, WS_BYTES), (SSP, P_WSP, 2048*4096), (SOUT, P_OUT, 2048*1280),
                           (SBS, P_BSP, 4096), (SGW, P_GW, 1280)):
            s(f"s_mov_b32 s{n}, s{p}\ns_mov_b32 s{n+1}, s{p+1}\ns_mov_b32 s{n+2}, {size}\ns_mov_b32 s{n+3}, 0x20000")
        s(f"""
        s_cmp_lt_u32 s{sRSEL}, 2
        s_cselect_b32 s{SW}, s{P_WQKV}, s{P_WIN}
        s_cselect_b32 s{SW+1}, s{P_WQKV+1}, s{P_WIN+1}
        s_mov_b32 s{sT0}, {640*3456}
        s_cselect_b32 s{SW+2}, {640*3840}, s{sT0}
        s_mov_b32 s{SW+3}, 0x20000
        """)
        if self.o["stamps"] == 3:
            s(f"s_mov_b32 s32, s{P_DBG}\ns_mov_b32 s33, s{P_DBG+1}\ns_mov_b32 s34, 256\ns_mov_b32 s35, 0x20000")
        self.stamp(s, 0)
        s(f"""
        s_cmp_lt_u32 s{sRSEL}, 2
        s_cbranch_scc1 L_qkv
        s_cmp_eq_u32 s{sROLE}, 7
        s_cbranch_scc1 L_misc
        """)
        return s

    def load_tag(self, s):
        s(f"v_mov_b32 v{vTAG}, {EPOCH}")
        s(f"buffer_load_dword v{vTAG}, v{vTAG}, {srd(SWS)}, 0 offen sc1")

    def make_tag(self, s):
        s(f"v_add_u32 v{vTAG}, {TAG_INC}, v{vTAG}\nv_readfirstlane_b32 s{sTAG}, v{vTAG}")

    def x_read_addrs(self, s):
        s(f"""
        v_and_b32 v28, 31, v{vLANE}
        v_lshrrev_b32 v29, 5, v{vLANE}
        v_bfe_u32 v30, v{vLANE}, 1, 3
        v_xor_b32 v29, v29, v30
        v_lshlrev_b32 v29, 4, v29
        v_lshl_add_u32 v8, v28, 7, v29
        v_add_u32 v8, s{sXB}, v8
        v_xor_b32 v9, 32, v8
        v_xor_b32 v10, 64, v8
        v_xor_b32 v11, 96, v8
        """)

    def x_dma(self, g):
        u = []
        for j in range(4):
            t = S()
            if j == 0:
                t(f"s_add_u32 m0, s{sXB}, {XR + (g % 4)*16384}\ns_mov_b32 s{sXO}, {g*128}")
            t(f"buffer_load_dwordx4 v{4+j}, {srd(SX)}, s{sXO} offen offset:{j*1024} lds")
            u.append(t)
        return u

    def stage1(self, items, nstage, w_dma, pre):
        R = self.o["R"]
        FB = 40
        s = S()
        last = {}
        def issue(units, key):
            for t in units:
                s.extend(t)
            last[key] = units[-1][-1]
        for g in range(4):
            issue(self.x_dma(g), ("x", g)); issue(w_dma(g), ("w", g))
            if g == 0:
                self.load_tag(s)
        s.extend(pre)
        queue = []
        bars = {}
        seen = set()
        xrd = {}
        def reads(n):
            it = items[n]; g = it["g"]
            if g not in seen:
                seen.add(g)
                while queue and (("w", g) not in last or (g < 10 and ("x", g) not in last)):
                    pop()
                s.wait(last.get(("x", g)), last[("w", g)])
                bars[g] = s("s_barrier")
                if g == 1:
                    self.make_tag(s)
                if g >= 2 and g + 2 < nstage:
                    us = w_dma(g + 2); queue.extend((t, ("w", g + 2) if t is us[-1] else None) for t in us)
                if g >= 1 and g + 3 < 10:
                    us = self.x_dma(g + 3); us[0].insert(0, I("wait", kind="wait", tgt=[xrd[g - 1]])); queue.extend((t, ("x", g + 3) if t is us[-1] else None) for t in us)
            if it["chunk"] == 0 and it["first_tile"]:
                j = it["j"]
                xrd[g] = s(f"ds_read_b128 {ar(4*j, 4)}, v{8 + (j & 3)} offset:{XR + (g % 4)*16384}")
            for t in it["reads"](FB + 4*(n % R)):
                s(t)
        def pop():
            t, key = queue.pop(0)
            s.extend(t)
            if key: last[key] = t[-1]
        for n in range(R):
            reads(n)
        for n, it in enumerate(items):
            if it["chunk"] == 1 and items[n-1]["chunk"] == 0:
                s.mark("chunk2")
            b = vr(FB + 4*(n % R), 4); x = ar(4*it["j"], 4); acc = vr(it["acc"], 16)
            c = "0" if it["init"] else acc
            s(f"v_mfma_f32_32x32x16_bf16 {acc}, {b}, {x}, {c}" if it["tr"] else f"v_mfma_f32_32x32x16_bf16 {acc}, {x}, {b}, {c}")
            if n + R < len(items):
                reads(n + R)
            if queue:
                pop()
        k = next(i for i, x in enumerate(s) if x.kind == "mark" and x.text == "chunk2")
        return S(s[:k]), S(s[k+1:]), bars

    def tr_lane(self, s, vr_, vc, vch, vh):
        s(f"""
        v_bfe_u32 v{vr_}, v{vLANE}, 2, 2
        v_and_b32 v{vc}, 3, v{vLANE}
        v_bfe_u32 v{vch}, v{vLANE}, 4, 1
        v_lshrrev_b32 v{vh}, 5, v{vLANE}
        """)

    def a_setup(self, s):
        s(f"""
        v_lshrrev_b32 v8, 3, v{vLANE}
        v_and_b32 v9, 7, v{vLANE}
        v_lshrrev_b32 v10, 4, v{vLANE}
        v_xor_b32 v9, v9, v10
        v_lshlrev_b32 v9, 4, v9
        v_lshl_add_u32 v4, v8, 12, v9
        v_xor_b32 v5, 64, v4
        v_add_u32 v5, {8*4096-1024}, v5
        s_mul_i32 s{sAB}, s{sWAVE}, 24576
        s_add_u32 s{sAB}, s{sAB}, {AST}
        v_and_b32 v8, 15, v{vLANE}
        v_lshrrev_b32 v9, 1, v8
        v_xor_b32 v9, v9, v10
        v_lshlrev_b32 v9, 4, v9
        v_lshl_add_u32 v6, v8, 7, v9
        v_add_u32 v6, s{sAB}, v6
        v_xor_b32 v7, 64, v6
        s_lshl_b32 s{sT0}, s{sTB}, 18
        s_lshl_b32 s{sT1}, s{sWAVE}, 10
        s_add_u32 s{sT0}, s{sT0}, s{sT1}
        """)
        for m in range(4):
            s(f"s_add_u32 s{sT1}, s{sWAVE}, {m}\ns_and_b32 s{sT1}, s{sT1}, 3\ns_lshl_b32 s{sT1}, s{sT1}, 16\ns_add_u32 s{sROW+m}, s{sT0}, s{sT1}")

    def a_dma(self, c):
        u = []
        for m in range(4):
            t = S()
            t(f"s_add_u32 m0, s{sAB}, {(c % 3)*8192 + m*2048}\ns_add_u32 s{sXO}, s{sROW+m}, {c*128}")
            t(f"buffer_load_dwordx4 v4, {srd(SSP)}, s{sXO} offen lds")
            t(f"buffer_load_dwordx4 v5, {srd(SSP)}, s{sXO} offen offset:1024 lds")
            u.append(t)
        return u

    def a_read(self, s, c):
        last = None
        for jj in range(2):
            for m in range(4):
                last = s(f"ds_read_b128 {ar((2*c+jj)*16 + 4*m, 4)}, v{6+jj} offset:{(c % 3)*8192 + m*2048}")
        return last

    def role_z(self):
        pre0 = S()
        pre0(f"""
        v_lshrrev_b32 v28, 4, v{vLANE}
        v_bfe_u32 v29, v{vLANE}, 2, 2
        v_xor_b32 v29, v29, v28
        v_and_b32 v30, 3, v{vLANE}
        v_lshlrev_b32 v30, 4, v30
        v_lshl_add_u32 v29, v29, 6, v30
        s_lshl_b32 s{sT0}, s{sWAVE}, 4
        v_add_u32 v28, s{sT0}, v28
        v_mul_u32_u24 v28, 3456, v28
        s_lshl_b32 s{sT0}, s{sROLE}, 8
        v_add3_u32 v12, v28, v29, s{sT0}
        v_add_u32 v13, {4*3456-1024}, v12
        v_add_u32 v14, {2*(4*3456-1024)}, v12
        v_add_u32 v15, {3*(4*3456-1024)}, v12
        s_add_u32 s{sWB}, s{sXB}, {WR}
        """)
        def w_dma(g):
            u = []
            for j in range(4):
                t = S()
                if j == 0:
                    off = (g % 10)*64*3456 + (1664 if g < 10 else 0)
                    t(f"s_add_u32 m0, s{sWB}, {(g % 4)*16384}\ns_mov_b32 s{sWO}, {off}")
                t(f"buffer_load_dwordx4 v{12+j}, {srd(SW)}, s{sWO} offen offset:{j*1024} lds")
                u.append(t)
            return u
        pre = S()
        self.x_read_addrs(pre)
        self.tr_lane(pre, 28, 29, 30, 31)
        pre(f"""
        v_lshl_add_u32 v31, v31, 3, v28
        v_lshlrev_b32 v31, 8, v31
        v_lshl_add_u32 v31, v30, 5, v31
        v_lshl_add_u32 v31, v29, 3, v31
        v_lshl_add_u32 v31, v28, 6, v31
        v_add_u32 v22, {WR}, v31
        v_xor_b32 v23, 64, v22
        v_xor_b32 v24, 128, v22
        v_xor_b32 v25, 192, v22
        """)
        items = []
        for g in range(20):
            for ks in range(4):
                for t in range(4):
                    off = (g % 4)*16384 + ks*4096
                    items.append(dict(g=g, j=(g % 10)*4 + ks, first_tile=t == 0, chunk=g // 10, acc=64 + 64*(g // 10) + 16*t,
                                      init=(g % 10 == 0 and ks == 0), tr=True,
                                      reads=lambda b, t=t, off=off: [f"ds_read_b64_tr_b16 {vr(b,2)}, v{22+t} offset:{off}",
                                                                     f"ds_read_b64_tr_b16 {vr(b+2,2)}, v{22+t} offset:{off+1024}"]))
        c1, c2, bars = self.stage1(items, 20, w_dma, pre)
        C1, C2, S1, S2 = 32, 33, 36, 38
        tmp = [192, 193, 194, 195]
        f = S()
        f(f"v_mov_b32 v{C1}, {f32(GC1)}\nv_mov_b32 v{C2}, {f32(GC2)}\nv_mov_b32 v{S1}, 0\nv_mov_b32 v{S2}, 0")
        f(f"s_cmp_eq_u32 s{sROLE}, 0")
        f.glue()
        f(f"s_cselect_b32 s{sT2}, 0, 1.0")
        for t in range(4):
            self.gelu(f, list(range(64 + 16*t, 80 + 16*t)), tmp, C1, C2, stats=(S1, S2))
            if t == 0:
                f(f"v_mul_f32 v{S1}, s{sT2}, v{S1}\nv_mul_f32 v{S2}, s{sT2}, v{S2}")
        f(f"""
        v_mov_b32 v{S1+1}, v{vTAG}
        v_mov_b32 v{S2+1}, v{vTAG}
        v_lshlrev_b32 v34, 4, v{vLANE}
        s_lshl_b32 s{sT3}, s{sRG}, 13
        s_add_u32 s{sT3}, s{sT3}, {ST}
        s_lshl_b32 s{sT4}, s{sROLE}, 10
        s_add_u32 s{sT4}, s{sT4}, s{sT3}
        buffer_store_dwordx4 {vr(S1,4)}, v34, {srd(SWS)}, s{sT4} offen sc1
        """)
        c2m, rest = interleave(c2, f, self.o["fillz"])
        s = S(pre0); s.extend(c1); self.stamp(s, 1); s.extend(c2m); s.extend(rest)
        self.stamp(s, 2)
        G0 = 196
        lds_ = "\n".join(f"buffer_load_dwordx4 {vr(G0+4*c,4)}, v{34 if c < 4 else 35}, {srd(SWS)}, s{sT3} offen offset:{(c & 3)*1024} sc1" for c in range(7))
        s(f"v_add_u32 v35, 4096, v34")
        s(lds_)
        s.wait_all(vm=False, lg=True)
        s("s_barrier")
        self.a_setup(s)
        for c in range(3):
            for t in self.a_dma(c): s.extend(t)
        test = "v_mov_b32 v192, 0\n" + "".join(
            f"v_xor_b32 v193, s{sTAG}, v{G0+4*c+1}\nv_xor_b32 v194, s{sTAG}, v{G0+4*c+3}\nv_or3_b32 v192, v192, v193, v194\n" for c in range(7)) + "v_cmp_ne_u32 vcc, 0, v192"
        self.check(s, lds_, test)
        self.stamp(s, 3)
        for c in range(1, 7):
            s(f"v_add_f32 v{G0}, v{G0}, v{G0+4*c}\nv_add_f32 v{G0+2}, v{G0+2}, v{G0+4*c+2}")
        s(f"""
        v_mov_b32 v{G0+1}, v{G0}
        v_mov_b32 v{G0+3}, v{G0+2}
        v_permlane32_swap_b32 v{G0}, v{G0+1}
        v_permlane32_swap_b32 v{G0+2}, v{G0+3}
        v_add_f32 v{G0}, v{G0}, v{G0+1}
        v_add_f32 v{G0+2}, v{G0+2}, v{G0+3}
        v_mul_f32 v{G0}, {f32(1/864)}, v{G0}
        v_mul_f32 v{G0+2}, {f32(1/864)}, v{G0+2}
        v_fma_f32 v{G0+2}, -v{G0}, v{G0}, v{G0+2}
        v_max_f32 v{G0+2}, 0, v{G0+2}
        v_add_f32 v{G0+2}, {f32(1e-5)}, v{G0+2}
        v_rsq_f32 v{G0+2}, v{G0+2}
        """)
        s(f"""
        s_mul_i32 s{sT0}, s{sWAVE}, {32*TB_P}
        v_and_b32 v28, 31, v{vLANE}
        v_lshrrev_b32 v29, 5, v{vLANE}
        v_mul_u32_u24 v30, {TB_P}, v28
        v_lshl_add_u32 v30, v29, 3, v30
        v_add_u32 v12, s{sT0}, v30
        v_mul_f32 v{G0}, v{G0}, v{G0+2}
        v_lshrrev_b32 v30, 4, v{vLANE}
        v_bfe_u32 v31, v{vLANE}, 2, 2
        v_lshl_add_u32 v30, v30, 3, v31
        v_mul_u32_u24 v30, {TB_P}, v30
        v_and_b32 v31, 3, v{vLANE}
        v_lshl_add_u32 v30, v31, 3, v30
        v_add_u32 v13, s{sT0}, v30
        s_mul_i32 s{sT0}, s{sRG}, {54*1024}
        s_lshl_b32 s{sT1}, s{sROLE}, 13
        s_add_u32 s{sT0}, s{sT0}, s{sT1}
        s_add_u32 s{sT0}, s{sT0}, {Z2F - 2048}
        v_add_u32 v14, s{sT0}, v34
        v_add_u32 v15, 4096, v14
        s_cmp_eq_u32 s{sROLE}, 0
        s_cselect_b32 s{sT1}, {OOB}, 0
        v_add_u32 v16, s{sT1}, v14
        """)
        P0, F0 = 200, 208
        zst = None
        for t in range(4):
            a = 64 + 16*t
            for r in range(16):
                s(f"v_fma_f32 v{a+r}, v{a+r}, v{G0+2}, -v{G0}")
            for r in range(8):
                s(f"v_cvt_pk_bf16_f32 v{a+r}, v{a+2*r}, v{a+2*r+1}")
            for g in range(4):
                w = s(f"ds_write_b64 v12, {vr(a+2*g,2)} offset:{t*64 + g*16}")
        s.wait(w)
        for t in range(4):
            for j in range(2):
                b = F0 + 8*t + 4*j
                s(f"ds_read_b64_tr_b16 {vr(b,2)}, v13 offset:{t*64 + j*32}")
                s(f"ds_read_b64_tr_b16 {vr(b+2,2)}, v13 offset:{t*64 + j*32 + 4*TB_P}")
        for t in range(4):
            for j in range(2):
                b = F0 + 8*t + 4*j
                va = 16 if t == 0 else (14 if t == 1 else 15)
                zst = s(f"buffer_store_dwordx4 {vr(b,4)}, v{va}, {srd(SWS)}, 0 offen offset:{((t & 1)*2 + j)*1024} sc1")
        self.stamp(s, 4)
        s(f"""
        v_lshrrev_b32 v30, 4, v28
        s_lshl_b32 s{sT0}, s{sRG}, 1
        v_add_u32 v30, s{sT0}, v30
        v_mul_u32_u24 v30, {27*1024}, v30
        v_and_b32 v31, 15, v28
        v_lshl_add_u32 v31, v29, 4, v31
        v_lshl_add_u32 v30, v31, 4, v30
        s_lshl_b32 s{sT0}, s{sROLE}, 12
        s_add_u32 s{sT0}, s{sT0}, {Z1F}
        v_add_u32 v12, s{sT0}, v30
        s_cmp_eq_u32 s{sROLE}, 6
        s_cselect_b32 s{sT1}, {OOB}, 0
        v_add_u32 v13, s{sT1}, v12
        s_lshl_b32 s{sT2}, s{sROLE}, 8
        s_lshl_b32 s{sT3}, s{sRG}, 2
        s_add_u32 s{sT2}, s{sT2}, s{sT3}
        s_add_u32 s{sT3}, s{sT2}, {F_Z2}
        s_add_u32 s{sT4}, s{sT2}, {F_Z1}
        """)
        z1st = None
        for t in range(4):
            a = 128 + 16*t
            self.gelu(s, list(range(a, a + 16)), tmp, C1, C2)
            p = 64 + 8*t
            for k, g in enumerate((0, 2, 1, 3)):
                s(f"v_cvt_pk_bf16_f32 v{p+2*k}, v{a+4*g}, v{a+4*g+1}\nv_cvt_pk_bf16_f32 v{p+2*k+1}, v{a+4*g+2}, v{a+4*g+3}")
            if t == 1:
                s.wait(zst); self.flag(s, sT3)
            for pc in range(2):
                z1st = s(f"buffer_store_dwordx4 {vr(p+4*pc,4)}, v{13 if t == 3 else 12}, {srd(SWS)}, 0 offen offset:{t*1024 + pc*512} sc1")
        s.wait(z1st); self.flag(s, sT4)
        self.stamp(s, 5)
        s("s_branch L_tail")
        return s

    def role_qkv(self):
        pre0 = S()
        pre0("L_qkv:")
        pre0(f"s_mul_i32 s{sT0}, s{sROLE}, 160\ns_mul_i32 s{sT1}, s{sWAVE}, {16*3840}\ns_add_u32 s{sT1}, s{sT1}, s{sT0}\ns_add_u32 s{sT1}, s{sT1}, 1280")
        pre0(f"s_mul_i32 s{sWB}, s{sWAVE}, 5120\ns_add_u32 s{sWB}, s{sWB}, {WR}")
        assert all((n*3277) >> 16 == n // 20 for n in range(320)) and all((n*6554) >> 16 == n // 10 for n in range(320))
        for j in range(5):
            imm = (j & 3)*1024
            pre0(f"""
            v_add_u32 v28, {64*j}, v{vLANE}
            v_mul_u32_u24 v29, 3277, v28
            v_lshrrev_b32 v29, 16, v29
            v_mul_u32_u24 v30, 20, v29
            v_sub_u32 v28, v28, v30
            v_cmp_lt_u32 vcc, 9, v28
            v_mul_u32_u24 v29, 3840, v29
            v_lshl_add_u32 v29, v28, 4, v29
            v_add_u32 v30, {1280-160}, v29
            v_cndmask_b32 v29, v29, v30, vcc
            v_add_u32 v29, s{sT1}, v29
            v_subrev_u32 v{12+j}, {imm}, v29
            """)
        def w_dma(g):
            u = []
            for j in range(5):
                t = S()
                if j == 0:
                    off = g*64*3840 if g < 10 else (g - 10)*128*3840
                    t(f"s_add_u32 m0, s{sWB}, {(g % 4)*20480}\ns_mov_b32 s{sWO}, {off}")
                if j == 4:
                    t(f"s_add_u32 m0, s{sWB}, {(g % 4)*20480 + 4096}")
                t(f"buffer_load_dwordx4 v{(12 if g < 10 else 17)+j}, {srd(SW)}, s{sWO} offen offset:{(j & 3)*1024} lds")
                u.append(t)
            return u
        pre = S()
        self.x_read_addrs(pre)
        pre(f"s_mul_i32 s{sT1}, s{sWAVE}, {32*3840}\ns_add_u32 s{sT1}, s{sT1}, s{sT0}")
        for j in range(5):
            imm = (j & 3)*1024
            pre(f"""
            v_add_u32 v28, {64*j}, v{vLANE}
            v_mul_u32_u24 v29, 6554, v28
            v_lshrrev_b32 v29, 16, v29
            v_mul_u32_u24 v30, 10, v29
            v_sub_u32 v28, v28, v30
            v_and_b32 v30, 24, v29
            v_bfe_u32 v31, v29, 1, 2
            v_and_b32 v29, 1, v29
            v_lshl_add_u32 v29, v29, 2, v31
            v_add_u32 v29, v29, v30
            v_mul_u32_u24 v29, 3840, v29
            v_lshl_add_u32 v29, v28, 4, v29
            v_add_u32 v29, s{sT1}, v29
            v_subrev_u32 v{17+j}, {imm}, v29
            """)
        self.tr_lane(pre, 28, 29, 30, 31)
        pre(f"""
        v_lshl_add_u32 v32, v31, 3, v28
        v_mul_u32_u24 v32, 320, v32
        v_lshl_add_u32 v32, v29, 3, v32
        v_add_u32 v32, {WR}, v32
        v_lshl_add_u32 v22, v30, 5, v32
        v_add_u32 v23, 40960, v22
        v_mul_u32_u24 v33, 160, v30
        v_add_u32 v24, v33, v32
        v_add_u32 v25, 40960, v24
        v_lshl_add_u32 v32, v31, 2, v28
        v_mul_u32_u24 v32, 320, v32
        v_lshl_add_u32 v32, v29, 3, v32
        v_lshl_add_u32 v32, v30, 5, v32
        v_add_u32 v26, {WR}, v32
        v_add_u32 v27, 40960, v26
        """)
        items = []
        for g in range(10):
            for ks in range(4):
                for t, (vb, col) in enumerate(((22, 0), (22, 64), (24, 128), (22, 160), (22, 224))):
                    sl = g % 4
                    off = (sl & 1)*20480 + ks*16*320 + col
                    items.append(dict(g=g, j=g*4 + ks, first_tile=t == 0, chunk=0, acc=64 + 16*t, init=(g == 0 and ks == 0), tr=False,
                                      reads=lambda b, v=vb + (sl >> 1), off=off: [f"ds_read_b64_tr_b16 {vr(b,2)}, v{v} offset:{off}",
                                                                                 f"ds_read_b64_tr_b16 {vr(b+2,2)}, v{v} offset:{off+1280}"]))
        for g in range(10, 15):
            for ks in range(8):
                for t in range(3):
                    sl = g % 4
                    off = (sl & 1)*20480 + ks*16*160 + t*64
                    items.append(dict(g=g, j=(g - 10)*8 + ks, first_tile=t == 0, chunk=1, acc=144 + 16*t, init=(g == 10 and ks == 0), tr=True,
                                      reads=lambda b, v=26 + (sl >> 1), off=off: [f"ds_read_b64_tr_b16 {vr(b,2)}, v{v} offset:{off}",
                                                                                 f"ds_read_b64_tr_b16 {vr(b+2,2)}, v{v} offset:{off+160}"]))
        c1, c2, bars = self.stage1(items, 15, w_dma, pre)
        sL2E, sEPS, sMASK = 92, 93, 94
        tmp = list(range(192, 200))
        f = S()
        f(f"""
        s_mov_b32 s{sL2E}, {f32(LOG2E)}
        s_mov_b32 s{sEPS}, {f32(1e-6)}
        s_mov_b32 s{sMASK}, 0xffff
        s_mov_b32 s{sMASK+1}, 0xffff
        s_lshl_b32 s{sT2}, s{sROLE}, 2
        s_add_u32 s{sT2}, s{sT2}, s{sWAVE}
        s_lshr_b32 s{sT3}, s{sT2}, 1
        s_lshl_b32 s{sT3}, s{sT3}, 7
        s_add_u32 s{sT3}, s{sT3}, {F_ZERO}
        v_mov_b32 v34, s{sT3}
        """)
        self.phi(f, list(range(64, 96)), tmp, sL2E, sEPS)
        self.phi(f, list(range(96, 112)), tmp, sL2E, sEPS, mask=sMASK)
        chk_zero = self.poll(f, 35, 34)
        for t in range(5):
            a = 64 + 16*t
            for r in range(8):
                f(f"v_cvt_pk_bf16_f32 v{a+r}, v{a+2*r}, v{a+2*r+1}")
        f(f"""
        v_and_b32 v28, 31, v{vLANE}
        v_lshrrev_b32 v29, 5, v{vLANE}
        v_mul_u32_u24 v30, {PKV_P}, v28
        v_lshl_add_u32 v30, v29, 4, v30
        s_lshl_b32 s{sT3}, s{sWAVE}, 6
        v_add_u32 v12, s{sT3}, v30
        v_add_u32 v13, {64*PKV_P}, v12
        v_cndmask_b32_e64 v13, v13, v12, s[{sMASK}:{sMASK+1}]
        v_lshlrev_b32 v14, 2, v{vLANE}
        v_mov_b32 v15, 0x3f803f80
        v_lshlrev_b32 v16, 4, v0
        v_mov_b32 v192, 0
        v_mov_b32 v193, 0
        v_mov_b32 v194, 0
        v_mov_b32 v195, 0
        """)
        f.mark("pkv")
        for t, (vb, col) in enumerate(((12, 0), (12, 32), (13, 64), (12, 80), (12, 112))):
            for ks in range(2):
                f(f"ds_write_b128 v{vb}, {vr(64 + 16*t + 4*ks, 4)} offset:{PKV + col*PKV_P + ks*32}")
        f(f"ds_write_b32 v14, v15 offset:{PKV + 160*PKV_P}")
        for i in range(4):
            f(f"ds_write_b128 v16, v[192:195] offset:{KVL + i*4096}")
        c2m, rest = interleave(c2, f, self.o["fillq"])
        c2m.extend(rest)
        ib = next(i for i, x in enumerate(c2m) if x is bars[11]); ip = next(i for i, x in enumerate(c2m) if x.kind == "mark" and x.text == "pkv")
        assert ip > ib
        s = S(pre0); s.extend(c1); self.stamp(s, 1); s.extend(c2m)
        self.stamp(s, 2)
        s.wait_all(vm=False, lg=True)
        s("s_barrier")
        s(f"""
        s_mul_i32 s{sT0}, s{sWAVE}, 20
        v_min_u32 v30, 19, v28
        v_add_u32 v30, s{sT0}, v30
        v_mul_u32_u24 v30, {PKV_P}, v30
        v_lshl_add_u32 v12, v29, 4, v30
        v_add_u32 v30, {80*PKV_P}, v30
        v_mov_b32 v31, {160*PKV_P}
        v_cmp_gt_u32 vcc, 20, v28
        v_cndmask_b32 v30, v31, v30, vcc
        v_lshl_add_u32 v13, v29, 4, v30
        """)
        for i in range(8):
            s(f"ds_read_b128 {vr(64+8*i,4)}, v12 offset:{PKV + i*32}\nds_read_b128 {vr(68+8*i,4)}, v13 offset:{PKV + i*32}")
        self.a_setup(s)
        s(f"""
        s_mul_i32 s{sT3}, s{sT2}, 3072
        s_add_u32 s{sT3}, s{sT3}, {KVT_G}
        v_mov_b32 v31, {OOB}
        v_cmp_gt_u32 vcc, 22, v28
        v_cndmask_b32 v15, v31, v14, vcc
        v_cmp_gt_u32 vcc, 22, v{vLANE}
        v_cndmask_b32 v16, v31, v14, vcc
        """)
        for i in range(8):
            s(f"v_mfma_f32_32x32x16_bf16 v[128:143], {vr(64+8*i,4)}, {vr(68+8*i,4)}, {'0' if i == 0 else 'v[128:143]'}")
        chk_zero(s)
        at = None
        for r in range(12):
            at = s(f"buffer_atomic_add_f32 v{128+r}, v{15 if r < 8 else 16}, {srd(SWS)}, s{sT3} offen offset:{r*256}")
        for c in range(3):
            for t in self.a_dma(c): s.extend(t)
        self.stamp(s, 3)
        self.phi(s, list(range(144, 184)), tmp, sL2E, sEPS)
        PQ = 200
        for r in range(20):
            s(f"v_cvt_pk_bf16_f32 v{PQ+r}, v{144+2*r}, v{145+2*r}")
        s(f"""
        s_lshl_b32 s{sT4}, s{sT2}, 7
        s_add_u32 s{sT4}, s{sT4}, {F_KV}
        s_lshl_b32 s{sT5}, s{sRB}, 2
        s_add_u32 s{sT5}, s{sT5}, s{sT4}
        v_and_b32 v30, 15, v{vLANE}
        v_lshl_add_u32 v34, v30, 2, s{sT4}
        """)
        s.wait(at); self.flag(s, sT5)
        s(f"s_lshl_b32 s{sT4}, s{sRG}, 8\ns_add_u32 s{sT4}, s{sT4}, {GG}\nv_lshl_add_u32 v17, v28, 3, s{sT4}")
        gld = f"buffer_load_dwordx2 v[18:19], v17, {srd(SWS)}, 0 offen sc1"
        s(gld)
        chk = self.poll(s, 35, 34)
        s(f"""
        s_mul_i32 s{sT0}, s{sWAVE}, 20
        v_add_u32 v30, s{sT0}, v28
        v_subrev_u32 v31, 20, v28
        v_lshlrev_b32 v31, 2, v31
        s_add_u32 s{sT1}, s{sWAVE}, 80
        v_add_u32 v31, s{sT1}, v31
        v_cmp_gt_u32 vcc, 20, v28
        v_cndmask_b32 v30, v31, v30, vcc
        v_mul_u32_u24 v30, {KVL_P}, v30
        v_lshl_add_u32 v30, v29, 3, v30
        s_lshl_b32 s{sT0}, s{sT0}, 1
        s_add_u32 s{sT0}, s{sT0}, {KVL}
        v_add_u32 v30, s{sT0}, v30
        v_mov_b32 v31, {KVL_DUMMY}
        v_cmp_gt_u32 vcc, 22, v28
        v_cndmask_b32 v12, v31, v30, vcc
        v_cmp_gt_u32 vcc, 22, v{vLANE}
        v_cndmask_b32 v13, v31, v30, vcc
        v_mul_u32_u24 v30, {KVL_P}, v28
        v_lshl_add_u32 v30, v29, 3, v30
        v_add_u32 v20, {KVL}, v30
        v_add_u32 v21, {32*KVL_P}, v20
        v_add_u32 v22, {64*KVL_P}, v20
        """)
        self.check(s, gld, f"v_cmp_ne_u32 vcc, s{sTAG}, v19")
        chk(s)
        self.stamp(s, 4)
        for r in range(12):
            s(f"buffer_load_dword v{64+r}, v14, {srd(SWS)}, s{sT3} offen offset:{r*256} sc1")
        for r in range(6):
            s(f"v_cvt_pk_bf16_f32 v{64+r}, v{64+2*r}, v{65+2*r}")
        for g in range(3):
            s(f"ds_write_b64 v{13 if g == 2 else 12}, {vr(64+2*g,2)} offset:{g*16}")
        s.wait_all(vm=False, lg=True)
        s("s_barrier")
        plan = [(0, k) for k in (0, 1, 2)] + [(1, k) for k in (1, 2, 3, 4)] + [(2, k) for k in range(5)]
        plan = plan[7:] + plan[:7]
        for i, (T, k) in enumerate(plan):
            s(f"ds_read2_b64 {vr(64+4*i,4)}, v{20+T} offset0:{4*k} offset1:{4*k+2}")
        firsts = set()
        for i, (T, k) in enumerate(plan):
            acc = vr(144 + 16*T, 16)
            s(f"v_mfma_f32_32x32x16_bf16 {acc}, {vr(64+4*i,4)}, {vr(PQ+4*k,4)}, {acc if T in firsts else '0'}")
            firsts.add(T)
        s(f"""
        v_lshrrev_b32 v30, 4, v28
        s_lshl_b32 s{sT0}, s{sRG}, 1
        v_add_u32 v30, s{sT0}, v30
        v_mul_u32_u24 v30, {47*1024}, v30
        v_and_b32 v31, 15, v28
        v_lshl_add_u32 v31, v29, 4, v31
        v_lshl_add_u32 v30, v31, 4, v30
        s_lshr_b32 s{sT0}, s{sROLE}, 1
        s_mul_i32 s{sT0}, s{sT0}, 5120
        s_add_u32 s{sT0}, s{sT0}, {AF}
        s_and_b32 s{sT1}, s{sROLE}, 1
        s_mul_i32 s{sT4}, s{sT1}, 3072
        s_add_u32 s{sT4}, s{sT4}, s{sT0}
        s_lshl_b32 s{sT1}, s{sT1}, 3
        s_add_u32 s{sT5}, s{sT0}, s{sT1}
        s_add_u32 s{sT5}, s{sT5}, 2048
        v_cmp_lt_u32 vcc, 31, v{vLANE}
        """)
        INV = 192
        for h in range(4): s(f"v_add_f32 v{INV+h}, s{sEPS}, v{184+h}")
        for h in range(4): s(f"v_rcp_f32 v{INV+h}, v{INV+h}")
        for h in range(4): s(f"v_mul_f32 v{INV+h}, v{INV+h}, v18")
        s(f"v_cndmask_b32 v{INV+4}, v{INV}, v{INV+1}, vcc\nv_cndmask_b32 v{INV+5}, v{INV+2}, v{INV+3}, vcc")
        ost = None
        for T in (2, 0, 1):
            a = 144 + 16*T
            order = (0, 2, 1, 3) if T < 2 else (0, 1)
            p = 64 + 8*T
            for k, g in enumerate(order):
                q0 = 8*T + 2*g
                iv = INV + q0 // 5 if q0 // 5 == (q0 + 1) // 5 else INV + 4 + (q0 // 5) // 2
                for r in range(4): s(f"v_mul_f32 v{a+4*g+r}, v{a+4*g+r}, v{iv}")
                s(f"v_cvt_pk_bf16_f32 v{p+2*k}, v{a+4*g}, v{a+4*g+1}\nv_cvt_pk_bf16_f32 v{p+2*k+1}, v{a+4*g+2}, v{a+4*g+3}")
            for pc in range(2):
                if T < 2:
                    ost = s(f"buffer_store_dwordx4 {vr(p+4*pc,4)}, v30, {srd(SWS)}, s{sT4} offen offset:{T*1024 + pc*512} sc1")
                else:
                    ost = s(f"buffer_store_dwordx2 {vr(p+2*pc,2)}, v30, {srd(SWS)}, s{sT5} offen offset:{pc*512} sc1")
        s(f"s_lshl_b32 s{sT0}, s{sRG}, 5\ns_lshl_b32 s{sT1}, s{sROLE}, 2\ns_add_u32 s{sT0}, s{sT0}, s{sT1}\ns_add_u32 s{sT0}, s{sT0}, {F_O}")
        s.wait(ost); self.flag(s, sT0)
        self.stamp(s, 5)
        s("s_branch L_tail")
        return s

    def role_misc(self):
        s = S()
        s("L_misc:")
        self.load_tag(s)
        assert all((n*820) >> 16 == n // 80 for n in range(640))
        for j in range(10):
            s(f"""
            v_add_u32 v28, {64*j}, v{vLANE}
            v_mul_u32_u24 v29, 820, v28
            v_lshrrev_b32 v29, 16, v29
            v_mul_u32_u24 v30, 80, v29
            v_sub_u32 v28, v28, v30
            v_lshlrev_b32 v30, 1, v29
            v_xor_b32 v28, v28, v30
            v_mul_u32_u24 v29, 1280, v29
            v_lshl_add_u32 v{12+j}, v28, 4, v29
            """)
        sST = 92
        last = None
        for sl in range(3):
            st = sST + sl
            s(f"""
            s_add_u32 s{st}, s{sRB}, {16*sl}
            s_mul_i32 s{sT0}, s{st}, 13
            s_lshr_b32 s{sT0}, s{sT0}, 6
            s_mul_i32 s{sT1}, s{sT0}, 5
            s_sub_u32 s{sT1}, s{st}, s{sT1}
            s_mul_i32 s{sT0}, s{sT0}, 160
            s_lshl_b32 s{sT2}, s{sT1}, 5
            s_add_u32 s{sT0}, s{sT0}, s{sT2}
            s_cmp_ge_u32 s{sT1}, 3
            s_cselect_b32 s{sT2}, 16, 0
            s_sub_u32 s{sT0}, s{sT0}, s{sT2}
            s_cmp_ge_u32 s{sWAVE}, 2
            s_cselect_b32 s{sT2}, 64, 0
            s_cmp_eq_u32 s{sT1}, 2
            s_cselect_b32 s{sT2}, s{sT2}, 0
            s_add_u32 s{sT0}, s{sT0}, s{sT2}
            s_min_u32 s{sT1}, s{st}, 46
            s_sub_u32 s{sT1}, s{sT1}, 20
            s_lshl_b32 s{sT1}, s{sT1}, 5
            s_mov_b32 s{sT3}, {864*1280}
            s_cmp_lt_u32 s{st}, 20
            s_cselect_b32 s{sT0}, s{sT0}, s{sT1}
            s_cselect_b32 s{SW}, s{P_WO}, s{P_WOUT}
            s_cselect_b32 s{SW+1}, s{P_WO+1}, s{P_WOUT+1}
            s_cselect_b32 s{SW+2}, {640*1280}, s{sT3}
            s_lshl_b32 s{sT1}, s{sWAVE}, 3
            s_add_u32 s{sT0}, s{sT0}, s{sT1}
            s_mul_i32 s{sWO}, s{sT0}, 1280
            s_mul_i32 s{sWB}, s{sWAVE}, 10240
            """)
            for j in range(10):
                s(f"s_add_u32 m0, s{sWB}, {sl*40960 + j*1024}")
                last = s(f"buffer_load_dwordx4 v{12+j}, {srd(SW)}, s{sWO} offen lds")
        assert all((n*13) >> 6 == n // 5 for n in range(20))
        self.make_tag(s)
        s(f"""
        v_mov_b32 v32, 0
        v_mov_b32 v33, 0
        v_mov_b32 v34, 0
        v_mov_b32 v35, 0
        v_lshlrev_b32 v36, 4, v{vLANE}
        s_cmp_eq_u32 s{sWAVE}, 0
        s_cselect_b32 s{sT1}, 0, {OOB}
        v_add_u32 v37, s{sT1}, v36
        v_add_u32 v38, s{sT1}, v{vL0}
        s_mul_i32 s{sT0}, s{sRB}, 6144
        s_add_u32 s{sT0}, s{sT0}, {KVT_G}
        s_add_u32 s{sT1}, s{sT0}, 4096
        """)
        for i in range(6):
            z = s(f"buffer_store_dwordx4 v[32:35], v37, {srd(SWS)}, s{sT0 if i < 4 else sT1} offen offset:{(i & 3)*1024} sc1")
        s(f"""
        v_and_b32 v28, 15, v{vLANE}
        v_lshrrev_b32 v29, 4, v{vLANE}
        v_lshlrev_b32 v30, 4, v28
        s_lshl_b32 s{sT2}, s{sRG}, 5
        v_add_u32 v29, s{sT2}, v29
        v_mul_u32_u24 v31, 1280, v29
        v_add_u32 v31, v31, v30
        """)
        GW, XB = 40, 64
        for i in range(5):
            s(f"buffer_load_dwordx4 {vr(GW+4*i,4)}, v30, {srd(SGW)}, 0 offen offset:{i*256}")
        s(f"s_lshl_b32 s{sT2}, s{sRB}, 7\ns_add_u32 s{sT2}, s{sT2}, {F_ZERO}")
        s.wait(z)
        s(f"buffer_store_dword v{vTAG}, v38, {srd(SWS)}, s{sT2} offen sc1")
        for grp in range(8):
            s(f"s_mov_b32 s{sT2}, {grp*4*1280}")
            for i in range(5):
                s(f"buffer_load_dwordx4 {vr(XB+20*grp+4*i,4)}, v31, {srd(SX)}, s{sT2} offen offset:{i*256}")
        ACC = 224
        for grp in range(8):
            s(f"v_mov_b32 v{ACC+grp}, 0")
        for i in range(20):
            for grp in range(8):
                s(f"v_dot2_f32_bf16 v{ACC+grp}, v{XB+20*grp+i}, v{GW+i}, v{ACC+grp}")
        for sh in (8, 4, 2, 1):
            for grp in range(8):
                s(f"v_add_f32_dpp v{ACC+grp}, v{ACC+grp}, v{ACC+grp} row_ror:{sh} row_mask:0xf bank_mask:0xf")
        for grp in range(8): s(f"v_mul_f32 v{ACC+grp}, {f32(-LOG2E)}, v{ACC+grp}")
        for grp in range(8): s(f"v_exp_f32 v{ACC+grp}, v{ACC+grp}")
        for grp in range(8): s(f"v_add_f32 v{ACC+grp}, 1.0, v{ACC+grp}")
        for grp in range(8): s(f"v_rcp_f32 v{64+2*grp}, v{ACC+grp}\nv_mov_b32 v{65+2*grp}, v{vTAG}")
        s(f"""
        v_lshlrev_b32 v29, 3, v29
        v_add_u32 v29, {GG}, v29
        v_mov_b32 v30, {OOB}
        v_cmp_eq_u32 vcc, 0, v28
        v_cndmask_b32 v29, v30, v29, vcc
        """)
        for grp in range(8):
            s(f"buffer_store_dwordx2 {vr(64+2*grp,2)}, v29, {srd(SWS)}, 0 offen offset:{grp*32} sc1")
        s.wait(last)
        s("s_barrier")
        s(f"""
        v_lshrrev_b32 v28, 2, v{vLANE}
        v_and_b32 v29, 7, v28
        v_lshlrev_b32 v29, 5, v29
        v_mul_u32_u24 v28, 1280, v28
        v_and_b32 v30, 3, v{vLANE}
        v_lshl_add_u32 v28, v30, 3, v28
        v_add_u32 v28, v28, v29
        s_mul_i32 s{sT0}, s{sWAVE}, 10
        """)
        for i in range(10):
            s(f"""
            s_add_u32 s{sT1}, s{sT0}, {i}
            s_and_b32 s{sT2}, s{sT1}, 7
            s_lshl_b32 s{sT2}, s{sT2}, 5
            s_lshr_b32 s{sT1}, s{sT1}, 3
            s_lshl_b32 s{sT1}, s{sT1}, 8
            v_xor_b32 v{12+i}, s{sT2}, v28
            v_add_u32 v{12+i}, s{sT1}, v{12+i}
            """)
        rst = None
        for sl in range(3):
            b0 = 96 + 40*sl
            for i in range(10):
                off = 40960 if sl == 1 else 0
                s(f"ds_read_b64_tr_b16 {vr(b0+4*i,2)}, v{12+i} offset:{off}\nds_read_b64_tr_b16 {vr(b0+4*i+2,2)}, v{12+i} offset:{off+20480}")
                if sl == 1: s(f"v_add_u32 v{12+i}, 81920, v{12+i}")
            s(f"""
            s_mul_i32 s{sT1}, s{sST+sl}, 40
            s_add_u32 s{sT1}, s{sT1}, s{sT0}
            s_lshl_b32 s{sT1}, s{sT1}, 10
            s_add_u32 s{sT1}, s{sT1}, {WF}
            s_cmp_lt_u32 s{sST+sl}, 47
            s_cselect_b32 s{sT2}, 0, {OOB}
            v_add_u32 v37, s{sT2}, v36
            """)
            for i in range(10):
                if i in (4, 8): s(f"s_add_u32 s{sT1}, s{sT1}, 4096")
                rst = s(f"buffer_store_dwordx4 {vr(b0+4*i,4)}, v37, {srd(SWS)}, s{sT1} offen offset:{(i & 3)*1024} sc1")
        s.wait_all(vm=False, lg=True)
        s("s_barrier")
        self.a_setup(s)
        s(f"s_lshl_b32 s{sT2}, s{sRG}, 2\ns_add_u32 s{sT2}, s{sT2}, {F_REP}")
        s.wait(rst); self.flag(s, sT2)
        for c in range(3):
            for t in self.a_dma(c): s.extend(t)
        self.stamp(s, 5)
        return s

    def tail(self):
        s = S()
        s("L_tail:")
        ACC, BB = 16, 128
        vB0, vB1, vB2, vP, vPA, vL16 = 8, 9, 10, 11, 12, 13
        s(f"""
        s_lshr_b32 s{sT0}, s{sFG}, 1
        s_and_b32 s{sT1}, s{sFG}, 1
        s_mul_i32 s{sT2}, s{sT0}, 14
        s_cmp_lt_u32 s{sFG}, 6
        s_cselect_b32 s{sT3}, 8, 6
        s_cselect_b32 s{sT5}, 0, {OOB}
        s_mul_i32 s{sT3}, s{sT3}, s{sT1}
        s_add_u32 s{sFT0}, s{sT2}, s{sT3}
        s_add_u32 s{sFT6}, s{sT2}, 6
        s_add_u32 s{sFT6}, s{sFT6}, s{sT1}
        s_cmp_lt_u32 s{sFG}, 6
        s_cselect_b32 s{sFT6}, s{sFT6}, s{sFT0}
        v_lshlrev_b32 v{vL16}, 4, v{vLANE}
        s_mul_i32 s{sT2}, s{sWAVE}, {16*54}
        s_add_u32 s{sT3}, s{sT2}, s{sFT0}
        s_lshl_b32 s{sT3}, s{sT3}, 10
        s_add_u32 s{sT3}, s{sT3}, {Z2F}
        v_add_u32 v{vB0}, s{sT3}, v{vL16}
        v_add_u32 v{vB1}, 4096, v{vB0}
        s_add_u32 s{sT3}, s{sT2}, s{sFT6}
        s_lshl_b32 s{sT3}, s{sT3}, 10
        s_add_u32 s{sT3}, s{sT3}, {Z2F}
        s_add_u32 s{sT3}, s{sT3}, s{sT5}
        v_add_u32 v{vB2}, s{sT3}, v{vL16}
        s_min_u32 s{sT2}, s{sFT0}, s{sFT6}
        s_add_u32 s{sT3}, s{sFT0}, 5
        s_max_u32 s{sT3}, s{sT3}, s{sFT6}
        s_lshr_b32 s92, s{sT2}, 3
        s_lshr_b32 s93, s{sT3}, 3
        s_add_u32 s{sT2}, s{sT2}, 2
        s_add_u32 s{sT3}, s{sT3}, 2
        s_lshr_b32 s{sT2}, s{sT2}, 3
        s_lshr_b32 s{sT3}, s{sT3}, 3
        s_sub_u32 s{sT3}, s{sT3}, s{sT2}
        s_lshl_b32 s{sT3}, s{sT3}, 8
        s_lshl_b32 s{sT2}, s{sT2}, 8
        s_lshl_b32 s{sT4}, s{sWAVE}, 6
        s_add_u32 s{sT2}, s{sT2}, s{sT4}
        s_add_u32 s{sT2}, s{sT2}, {F_Z2}
        v_bfe_u32 v14, v{vLANE}, 4, 1
        v_mul_u32_u24 v14, s{sT3}, v14
        v_and_b32 v15, 15, v{vLANE}
        v_lshl_add_u32 v14, v15, 2, v14
        v_add_u32 v{vPA}, s{sT2}, v14
        """)
        s.wait_all(vm=True, lg=False)
        rd = {}
        dm = {}
        for c in range(3):
            rd[c] = self.a_read(s, c)
        chk = None
        for c in range(3, 8):
            if c >= 6:
                s.wait(dm[c-3]); rd[c-3] = self.a_read(s, c - 3)
            s.wait(rd[c-3])
            for t in self.a_dma(c): s.extend(t)
            dm[c] = s[-1]
        chk = self.poll(s, vP, vPA)
        for c in range(5, 8):
            s.wait(dm[c]); rd[c] = self.a_read(s, c)
        self.stamp(s, 6)
        chk(s)
        self.stamp(s, 7)
        sBO = sWO
        def b_load(ks, j):
            t = S()
            if j == 0: t(f"s_mov_b32 s{sBO}, {ks*54*1024}")
            va, off = (vB0, j*1024) if j < 4 else ((vB1, (j-4)*1024) if j < 6 else (vB2, 0))
            t(f"buffer_load_dwordx4 {vr(BB + 28*(ks % 4) + 4*j, 4)}, v{va}, {srd(SWS)}, s{sBO} offen offset:{off} sc1")
            return t
        for ks in range(4):
            for j in range(7): s.extend(b_load(ks, j))
        vWF, vWF1, vWFx, vWFx1 = 240, 241, 242, 243
        vAF = 244
        vZ1, vZ6, vGA = 248, 249, 250
        vG, vBS = 14, 251
        s(f"""
        s_lshr_b32 s{sPM0}, s{sFT0}, 1
        s_lshr_b32 s{sPM6}, s{sFT6}, 1
        s_lshl_b32 s{sPM0}, s{sPM0}, 10
        s_lshl_b32 s{sPM6}, s{sPM6}, 10
        s_and_b32 s{sT0}, s{sFT6}, 1
        s_lshl_b32 s{sT0}, s{sT0}, 3
        s_add_u32 s{sPM6}, s{sPM6}, s{sT0}
        s_add_u32 s{sPM6}, s{sPM6}, s{sT5}
        s_lshl_b32 s{sT0}, s{sTB}, 2
        s_add_u32 s{sT0}, s{sT0}, s{sWAVE}
        v_add_u32 v{vZ1}, s{sPM0}, v{vL16}
        v_add_u32 v{vZ6}, s{sPM6}, v{vL16}
        s_mul_i32 s{sPM0}, s{sT0}, {27*1024}
        s_add_u32 s{sPM0}, s{sPM0}, {Z1F}
        s_mul_i32 s{sPM6}, s{sT0}, {47*1024}
        s_add_u32 s{sPM6}, s{sPM6}, {AF + 20*1024}
        s_lshl_b32 s{sT1}, s{sT0}, 4
        v_and_b32 v252, 15, v{vLANE}
        v_add_u32 v252, s{sT1}, v252
        v_lshlrev_b32 v{vGA}, 3, v252
        v_add_u32 v{vGA}, {GG}, v{vGA}
        v_lshlrev_b32 v252, 1, v252
        buffer_load_ushort v{vBS}, v252, {srd(SBS)}, 0 offen
        s_mul_i32 s{sT1}, s{sNG}, 5120
        s_add_u32 s{sT1}, s{sT1}, {WF}
        v_add_u32 v{vWF}, s{sT1}, v{vL16}
        v_add_u32 v{vWF1}, 4096, v{vWF}
        s_cmp_eq_u32 s{sWAVE}, 3
        s_cselect_b32 s{sT4}, {OOB}, 0
        v_add_u32 v{vWFx}, s{sT4}, v{vWF}
        v_add_u32 v{vWFx1}, s{sT4}, v{vWF1}
        """)
        for m in range(4):
            s(f"""
            s_add_u32 s{sT1}, s{sWAVE}, {m}
            s_and_b32 s{sT1}, s{sT1}, 3
            s_lshl_b32 s{sT2}, s{sTB}, 2
            s_add_u32 s{sT1}, s{sT1}, s{sT2}
            s_mul_i32 s{sT1}, s{sT1}, {47*1024}
            s_add_u32 s{sT1}, s{sT1}, {AF}
            v_add_u32 v{vAF+m}, s{sT1}, v{vL16}
            """)
        s(f"""
        s_lshr_b32 s{sT0}, s{sT0}, 1
        s_lshl_b32 s{sT0}, s{sT0}, 2
        s_add_u32 s{sT0}, s{sT0}, {F_Z1}
        s_lshl_b32 s92, s92, 8
        s_lshl_b32 s93, s93, 8
        s_add_u32 s92, s92, s{sT0}
        s_add_u32 s93, s93, s{sT0}
        s_lshl_b32 s{sT1}, s{sTB}, 6
        s_lshl_b32 s{sT2}, s{sWAVE}, 3
        s_add_u32 s{sT1}, s{sT1}, s{sT2}
        s_add_u32 s{sT1}, s{sT1}, {F_O}
        v_bfe_u32 v252, v{vLANE}, 1, 1
        v_and_b32 v253, 1, v{vLANE}
        v_lshlrev_b32 v253, 2, v253
        v_lshl_add_u32 v252, v252, 5, v253
        v_add_u32 v{vPA}, s{sT1}, v252
        v_mov_b32 v252, s92
        v_mov_b32 v253, s93
        v_cmp_eq_u32 vcc, 4, v{vLANE}
        v_cndmask_b32 v{vPA}, v{vPA}, v252, vcc
        v_cmp_eq_u32 vcc, 5, v{vLANE}
        v_cndmask_b32 v{vPA}, v{vPA}, v253, vcc
        v_lshlrev_b32 v252, 2, v{vLANE}
        v_add_u32 v252, {F_REP}, v252
        s_mul_i32 s92, s{sWAVE}, {5*40*1024}
        s_mul_i32 s93, s{sWAVE}, {7*40*1024}
        s_add_u32 s93, s93, {20*40*1024}
        s_mul_i32 s94, s{sWAVE}, {5*1024}
        s_mul_i32 s95, s{sWAVE}, {7*1024}
        s_add_u32 s95, s95, {20*1024}
        """)
        def wf_load(si, nt):
            t = S()
            if nt == 0:
                t(f"s_add_u32 s{sXO}, s{92 if si < 5 else 93}, {(si if si < 5 else si - 5)*40*1024}")
            x = si == 11
            va, off = ((vWFx if x else vWF), nt*1024) if nt < 4 else ((vWFx1 if x else vWF1), 0)
            t(f"buffer_load_dwordx4 {ar((si*5 + nt)*4, 4)}, v{va}, {srd(SWS)}, s{sXO} offen offset:{off} sc1")
            return t
        def af_load(si, m, dst):
            t = S()
            if m == 0:
                t(f"s_add_u32 s{sT0}, s{94 if si < 5 else 95}, {(si if si < 5 else si - 5)*1024}")
            if si == 11: t(f"v_add_u32 v{vAF+m}, s{sT4}, v{vAF+m}")
            t(f"buffer_load_dwordx4 {vr(dst, 4)}, v{vAF+m}, {srd(SWS)}, s{sT0} offen sc1")
            return t
        Z1R = 208
        late = []
        for p in range(3):
            t = S(); t(f"buffer_load_dwordx4 {vr(Z1R+4*p,4)}, v{vZ1}, {srd(SWS)}, s{sPM0} offen offset:{p*1024} sc1"); late.append(t)
        t = S(); t(f"buffer_load_dwordx2 {vr(Z1R+12,2)}, v{vZ6}, {srd(SWS)}, s{sPM0} offen sc1"); late.append(t)
        wfq = [wf_load(si, nt) for si in range(5) for nt in range(5)]
        gld = f"buffer_load_dwordx2 {vr(vG,2)}, v{vGA}, {srd(SWS)}, 0 offen sc1"
        for ks in range(16):
            if ks == 6:
                c1 = self.poll(s, vP, vPA); c2 = self.poll(s, 253, 252); s(gld)
            if ks == 11:
                c1(s); c2(s); self.check(s, gld, f"v_cmp_ne_u32 vcc, s{sTAG}, v{vG+1}")
            for j in range(7):
                for m in range(4):
                    acc = vr(ACC + 28*m + 4*j, 4)
                    s(f"v_mfma_f32_16x16x32_bf16 {acc}, {vr(BB + 28*(ks % 4) + 4*j, 4)}, {ar(16*ks + 4*m, 4)}, {acc if ks else '0'}")
                if ks + 4 < 16: s.extend(b_load(ks + 4, j))
                elif wfq: s.extend(wfq.pop(0))
        self.stamp(s, 8)
        for t in late: s.extend(t)
        vRW, vRR = 4, 7
        def red_setup(per):
            for m in range(1, 4):
                s(f"s_add_u32 s{sT1}, s{sWAVE}, {m}\ns_and_b32 s{sT1}, s{sT1}, 3\ns_mul_i32 s{sT1}, s{sT1}, {3*per*1024}\ns_add_u32 s{sT1}, s{sT1}, {(m-1)*per*1024}\nv_add_u32 v{vRW+m-1}, s{sT1}, v{vL16}")
            s(f"s_mul_i32 s{sT1}, s{sWAVE}, {3*per*1024}\nv_add_u32 v{vRR}, s{sT1}, v{vL16}")
        def reduce(acc, per, extra):
            n = 4*per
            for m in range(1, 4):
                for j in range(per):
                    s(f"ds_write_b128 v{vRW+m-1}, {vr(acc + n*m + 4*j, 4)} offset:{j*1024}")
                    if extra: s.extend(extra.pop(0))
            s.wait_all(vm=False, lg=True)
            s("s_barrier")
            for j in range(per):
                for m in range(1, 4):
                    s(f"ds_read_b128 {vr(acc + n*m + 4*j, 4)}, v{vRR} offset:{((m-1)*per + j)*1024}")
            for j in range(per):
                for m in range(1, 4):
                    for h in range(2):
                        a = acc + 4*j + 2*h
                        s(f"v_pk_add_f32 {vr(a,2)}, {vr(a,2)}, {vr(a + n*m, 2)}")
        red_setup(7)
        s("s_barrier")
        oq = [af_load(si, m, BB + 16*si + 4*m) for si in range(5) for m in range(4)]
        reduce(ACC, 7, oq)
        for t in oq: s.extend(t)
        s(f"""
        v_sub_f32 v{vG}, 1.0, v{vG}
        v_lshlrev_b32 v{vBS}, 16, v{vBS}
        v_mul_f32 v{vBS}, v{vBS}, v{vG}
        """)
        T0 = 224
        ust = None
        for j in range(7):
            a = ACC + 4*j; z = Z1R + 2*j
            for r in range(4): s(f"v_fma_f32 v{a+r}, v{a+r}, v{vG}, v{vBS}")
            s(f"v_lshlrev_b32 v{T0}, 16, v{z}\nv_and_b32 v{T0+1}, 0xffff0000, v{z}\nv_lshlrev_b32 v{T0+2}, 16, v{z+1}\nv_and_b32 v{T0+3}, 0xffff0000, v{z+1}")
            for r in range(4): s(f"v_mul_f32 v{a+r}, v{a+r}, v{T0+r}")
            s(f"v_cvt_pk_bf16_f32 v{z}, v{a}, v{a+1}\nv_cvt_pk_bf16_f32 v{z+1}, v{a+2}, v{a+3}")
            if j in (1, 3, 5):
                ust = s(f"buffer_store_dwordx4 {vr(z-2,4)}, v{vZ1}, {srd(SWS)}, s{sPM6} offen offset:{(j//2)*1024} sc1")
            if j == 6:
                ust = s(f"buffer_store_dwordx2 {vr(z,2)}, v{vZ6}, {srd(SWS)}, s{sPM6} offen sc1")
        self.stamp(s, 9)
        s(f"""
        s_lshl_b32 s{sT1}, s{sTB}, 7
        s_add_u32 s{sT1}, s{sT1}, {F_U}
        s_lshl_b32 s{sT2}, s{sFG}, 4
        s_lshl_b32 s{sT3}, s{sWAVE}, 2
        s_add_u32 s{sT2}, s{sT2}, s{sT3}
        s_add_u32 s{sT2}, s{sT2}, s{sT1}
        s_lshl_b32 s{sT3}, s{sWAVE}, 5
        s_add_u32 s{sT1}, s{sT1}, s{sT3}
        v_and_b32 v252, 7, v{vLANE}
        v_lshl_add_u32 v{vPA}, v252, 2, s{sT1}
        """)
        A2 = 44
        def mm(si, src):
            t = S()
            for m in range(4):
                for nt in range(5):
                    acc = vr(A2 + 20*m + 4*nt, 4)
                    t(f"v_mfma_f32_16x16x32_bf16 {acc}, {ar((si*5 + nt)*4, 4)}, {vr(src + 4*m, 4)}, {acc if si else '0'}")
            return t
        d = S()
        for si in range(5): d.extend(mm(si, BB + 16*si))
        wq = [wf_load(si, nt) for si in range(5, 12) for nt in range(5)]
        fl = S(); fl.wait(ust); self.flag(fl, sT2)
        wq.insert(14, fl)
        dm_, wq = spread(d, wq, 8)
        s.extend(dm_)
        for t in wq: s.extend(t)
        chk = self.poll(s, vP, vPA)
        self.stamp(s, 10)
        chk(s)
        self.stamp(s, 11)
        for si in range(5, 12):
            for m in range(4): s.extend(af_load(si, m, BB + 16*(si - 5) + 4*m))
        red_setup(5)
        s(f"""
        s_lshl_b32 s{sT0}, s{sTB}, 2
        s_add_u32 s{sT0}, s{sT0}, s{sWAVE}
        s_mul_i32 s{sT0}, s{sT0}, {16*1280}
        s_mul_i32 s{sT1}, s{sNG}, 160
        s_add_u32 s{sT5}, s{sT0}, s{sT1}
        v_and_b32 v252, 15, v{vLANE}
        v_mul_u32_u24 v252, 1280, v252
        v_lshrrev_b32 v253, 4, v{vLANE}
        v_lshl_add_u32 v252, v253, 3, v252
        """)
        s("s_barrier")
        for si in range(5, 12): s.extend(mm(si, BB + 16*(si - 5)))
        self.stamp(s, 12)
        reduce(A2, 5, [])
        for nt in range(5):
            a = A2 + 4*nt
            s(f"v_cvt_pk_bf16_f32 v{a}, v{a}, v{a+1}\nv_cvt_pk_bf16_f32 v{a+1}, v{a+2}, v{a+3}")
            s(f"buffer_store_dwordx2 {vr(a,2)}, v252, {srd(SOUT)}, s{sT5} offen offset:{nt*32}")
        s(f"""
        s_or_b32 s{sT0}, s2, s{sWAVE}
        s_cmp_eq_u32 s{sT0}, 0
        s_cselect_b32 s{sT0}, 0, {OOB}
        s_add_u32 s{sT0}, s{sT0}, {EPOCH}
        v_add_u32 v252, s{sT0}, v{vL0}
        buffer_store_dword v{vTAG}, v252, {srd(SWS)}, 0 offen sc1
        """)
        self.stamp(s, 13)
        s("L_end:\ns_endpgm")
        return s

    def build(self):
        parts = [self.prologue(), self.role_z(), self.role_qkv(), self.role_misc(), self.tail()]
        body = "".join(text_of(finish(p)) for p in parts)
        body += "".join(text_of(finish(r)) for r in self.retry)
        head = open("gated_mix__linear_attn_block__mixer_gmlp__prompt.s.ref").read().split("; Override launch")[0]
        return (head + f"; @launch grid=(256,1,1) block=(256,1,1) lds={LDS_BYTES}\n"
                '.amdgcn_target "amdgcn-amd-amdhsa--gfx950"\n.text\n'
                f".globl {KNAME}\n.p2align 8\n.type {KNAME},@function\n{KNAME}:\n" + body +
                "L_code_end:\n  s_endpgm\n"
                '.section .rodata,"a"\n.p2align 6\n'
                f".amdhsa_kernel {KNAME}\n"
                "  .amdhsa_next_free_vgpr 512\n  .amdhsa_next_free_sgpr 102\n  .amdhsa_accum_offset 256\n"
                "  .amdhsa_group_segment_fixed_size 0\n  .amdhsa_kernarg_size 96\n  .amdhsa_user_sgpr_count 2\n"
                "  .amdhsa_user_sgpr_kernarg_segment_ptr 1\n  .amdhsa_system_sgpr_workgroup_id_x 1\n"
                "  .amdhsa_float_denorm_mode_32 3\n"
                ".end_amdhsa_kernel\n")


if __name__ == "__main__":
    out = sys.argv[1]
    opt = {}
    for a in sys.argv[2:]:
        k, v = a.split("=")
        opt[k] = eval(v)
    open(out, "w").write(Gen(**opt).build())
```

```python
import re

TRANS = ("v_exp_f32", "v_rcp_f32", "v_rsq_f32", "v_log_f32", "v_sqrt_f32")
NO_DST_S = ("s_cmp", "s_waitcnt", "s_barrier", "s_branch", "s_cbranch", "s_nop", "s_sleep", "s_setprio", "s_endpgm", "s_bitcmp")
REG_RE = re.compile(r"^-?\|?(?:abs\()?([vas])(?:(\d+)|\[(\d+):(\d+)\])\)?\|?$")


def regs_of(tok):
    tok = tok.strip()
    if tok in ("vcc", "vcc_lo", "vcc_hi"):
        return [("s", "vcc")]
    if tok in ("exec", "exec_lo", "exec_hi"):
        return [("s", "exec")]
    if tok == "m0":
        return [("s", "m0")]
    m = REG_RE.match(tok)
    if not m:
        return []
    k = m.group(1)
    if m.group(2) is not None:
        return [(k, int(m.group(2)))]
    return [(k, i) for i in range(int(m.group(3)), int(m.group(4)) + 1)]


class I:
    __slots__ = ("text", "op", "kind", "w", "r", "srcc", "ab", "tgt", "cost", "wide_store", "data")

    def __init__(self, text, kind=None, tgt=None):
        self.text = text
        self.tgt = tgt
        self.w, self.r, self.srcc, self.ab, self.data = set(), set(), set(), set(), set()
        self.wide_store = False
        if kind is not None:
            self.kind, self.op, self.cost = kind, kind, 1
            return
        parts = text.split(None, 1)
        op = self.op = parts[0]
        rest = parts[1] if len(parts) > 1 else ""
        ops = [t.strip() for t in rest.split(",")] if rest else []
        mods = ""
        if ops:
            last = ops[-1].split(None, 1)
            ops[-1] = last[0]
            mods = last[1] if len(last) > 1 else ""
        R = [regs_of(t) for t in ops]
        flat = lambda ls: {x for l in ls for x in l}
        self.cost = 1
        if op.startswith("v_mfma"):
            self.kind = "mfma32" if "32x32" in op else "mfma16"
            self.w = set(R[0]); self.ab = flat(R[1:3]); self.srcc = set(R[3]); self.r = self.ab | self.srcc
            self.cost = 2
        elif op.startswith("v_"):
            base = re.sub(r"_e(32|64)$|_dpp$", "", op)
            self.kind = "trans" if base in TRANS else "valu"
            if self.kind == "trans":
                self.cost = 2
            self.w = set(R[0]); self.r = flat(R[1:])
            if "permlane" in op:
                self.w = flat(R[:2]); self.r = flat(R[:2])
            if base.startswith(("v_fmac", "v_dot2c", "v_pk_fmac")) or op.endswith("_dpp"):
                self.r |= set(R[0])
            if base.startswith("v_cndmask") and len(ops) == 3:
                self.r.add(("s", "vcc"))
        elif op.startswith("ds_read"):
            self.kind = "ds_r"; self.w = set(R[0]); self.r = flat(R[1:])
            self.cost = 2 if len(R[0]) == 4 else 1
        elif op.startswith("ds_write"):
            self.kind = "ds_w"; self.r = flat(R)
            self.cost = {"ds_write_b128": 10, "ds_write_b64": 5}.get(op, 3)
        elif op.startswith(("buffer_load", "global_load")):
            if re.search(r"\blds\b", mods):
                self.kind = "vm_dma"; self.r = flat(R) | {("s", "m0")}
            else:
                self.kind = "vm_ld"; self.w = set(R[0]); self.r = flat(R[1:])
            self.cost = 2
        elif op.startswith(("buffer_store", "buffer_atomic")):
            self.kind = "vm_st"; self.r = flat(R); self.data = set(R[0])
            self.wide_store = op.endswith(("x3", "x4"))
            self.cost = 6 if self.wide_store else 3
        elif op.startswith(("s_load", "s_memtime", "s_memrealtime")):
            self.kind = "smem"; self.w = set(R[0]); self.r = flat(R[1:])
        elif op.startswith(NO_DST_S):
            self.kind = "barrier" if op == "s_barrier" else ("branch" if "branch" in op else "sopp")
            self.r = flat(R)
        elif op.startswith("s_"):
            self.kind = "salu"; self.w = set(R[0]); self.r = flat(R[1:])
        else:
            raise ValueError("unknown instruction: " + text)

    def __repr__(self):
        return self.text


class S(list):
    def __call__(self, text):
        last = None
        for line in text.strip().split("\n"):
            line = line.split(";")[0].strip()
            if not line:
                continue
            if line.endswith(":"):
                last = I(line, kind="label")
            else:
                last = I(line)
            self.append(last)
        return last

    def wait(self, *targets):
        self.append(I("wait", kind="wait", tgt=[t for t in targets if t is not None]))

    def wait_all(self, vm=True, lg=True):
        self.append(I("waitall", kind="waitall", tgt=(vm, lg)))

    def virtual(self, regs=""):
        v = I("virtual", kind="vm_virt")
        for t in regs.split():
            v.w |= set(regs_of(t))
        self.append(v)
        return v

    def mark(self, name):
        self.append(I(name, kind="mark"))

    def at(self, n):
        self.mark(f"at:{n}")

    def bud(self, b):
        self.mark(f"bud:{b}")

    def glue(self):
        self.append(I("glue", kind="glue"))


def is_vm(i):
    return i.kind in ("vm_ld", "vm_st", "vm_dma")


def is_lg(i):
    return i.kind in ("ds_r", "ds_w")


def autoglue(stream):
    out = S()
    ins = list(stream)
    glue_next = [False] * len(ins)
    for i, x in enumerate(ins):
        if x.op.startswith(("s_cselect", "s_addc")):
            j = i - 1
            while not ins[j].op.startswith("s_cmp"):
                glue_next[j] = True; j -= 1
            glue_next[j] = True
    for x, g in zip(ins, glue_next):
        out.append(x)
        if g: out.glue()
    return out


def interleave(main, filler, budget, start=0, anchor=("mfma32", "mfma16"), stop=None):
    out = S()
    f = list(filler)
    pos = 0
    n = -1
    credit = 0.0
    used = 0.0
    for ins in main:
        if ins.kind in anchor:
            if n >= start and (stop is None or n < stop):
                tail = []
                while out and out[-1].kind == "wait":
                    tail.insert(0, out.pop())
                room = budget - used
                credit = (credit if credit < 0 else credit - int(credit)) + max(0.0, room)
                while pos < len(f) and room > 0:
                    if f[pos].kind == "mark" and f[pos].text.startswith("at:") and n < int(f[pos].text[3:]):
                        credit = 0.0
                        break
                    if f[pos].kind == "mark" and f[pos].text.startswith("bud:"):
                        budget = float(f[pos].text[4:])
                    c = 0 if f[pos].kind in ("mark", "glue", "label") else f[pos].cost
                    glued = pos > 0 and f[pos - 1].kind == "glue"
                    if not glued and f[pos].kind != "glue" and min(c, 2) > credit:
                        break
                    credit -= c
                    out.append(f[pos]); pos += 1
                out.extend(tail)
            n += 1
            used = 0.0
        elif ins.kind not in ("mark", "glue", "label"):
            used += ins.cost
        out.append(ins)
    return out, S(f[pos:])


def spread(main, extra, every, start=0):
    out = S()
    groups = list(extra)
    acc = -start
    prev_glue = False
    for ins in main:
        if groups and acc >= every and not prev_glue and ins.kind != "glue":
            out.extend(groups.pop(0)); acc = 0
        out.append(ins)
        prev_glue = ins.kind == "glue"
        if ins.kind not in ("mark", "glue", "label", "wait", "waitall"):
            acc += ins.cost
    return out, groups


def resolve(stream):
    out = S()
    vm, lg = [], []
    vm_done = lg_done = 0
    vm_idx, lg_idx = {}, {}
    pend = {}
    smem_pend = set()

    def emit_wait(nv, nl):
        parts = []
        if nv is not None:
            parts.append(f"vmcnt({nv})")
        if nl is not None:
            parts.append(f"lgkmcnt({nl})")
        if parts:
            out.append(I("s_waitcnt " + " ".join(parts)))

    def need(targets):
        nonlocal vm_done, lg_done
        v = max([vm_idx[id(t)] for t in targets if id(t) in vm_idx], default=-1)
        l = max([lg_idx[id(t)] for t in targets if id(t) in lg_idx], default=-1)
        for t in targets:
            assert id(t) in vm_idx or id(t) in lg_idx, f"wait target not issued yet: {t}"
        nv = nl = None
        if v >= vm_done:
            nv = min(63, len(vm) - 1 - v); vm_done = len(vm) - nv
        if l >= lg_done:
            nl = min(15, len(lg) - 1 - l)
            if smem_pend:
                nl = 0
            lg_done = len(lg) - nl
            if nl == 0:
                smem_pend.clear()
        emit_wait(nv, nl)

    for ins in stream:
        if ins.kind in ("mark", "glue"):
            continue
        if ins.kind == "vm_virt":
            vm_idx[id(ins)] = len(vm); vm.append(ins)
            for x in ins.w:
                pend[x] = ins
            continue
        if ins.kind == "wait":
            need(ins.tgt); continue
        if ins.kind == "waitall":
            v, l = ins.tgt
            emit_wait(0 if v else None, 0 if l else None)
            if v: vm_done = len(vm)
            if l: lg_done = len(lg); smem_pend.clear()
            continue
        touched = ins.r | ins.w
        if touched & smem_pend:
            emit_wait(None, 0); lg_done = len(lg); smem_pend.clear()
        t = [pend[x] for x in touched if x in pend]
        if t:
            need(t)
            for x in touched:
                pend.pop(x, None)
        out.append(ins)
        if is_vm(ins):
            vm_idx[id(ins)] = len(vm); vm.append(ins)
        if is_lg(ins):
            lg_idx[id(ins)] = len(lg); lg.append(ins)
        if ins.kind in ("vm_ld", "ds_r"):
            for x in ins.w:
                pend[x] = ins
        if ins.kind == "smem":
            smem_pend |= ins.w
    return out


def states(ins):
    if ins.kind == "label":
        return 0
    if ins.op == "s_nop":
        return int(ins.text.split()[1]) + 1
    return 1


def required(p, c):
    n = 0
    valu_p = p.kind in ("valu", "trans")
    valu_c = c.kind in ("valu", "trans")
    mf_p = p.kind in ("mfma32", "mfma16")
    mf_c = c.kind in ("mfma32", "mfma16")
    mem_c = is_vm(c) or is_lg(c)
    vw = {x for x in p.w if x[0] in "va"}
    sw = {x for x in p.w if x[0] == "s"}
    if valu_p:
        if mf_c and vw & c.r: n = max(n, 2)
        if valu_c and vw & c.r:
            if "permlane" in c.op or c.op.endswith("_dpp"): n = max(n, 2)
            if c.op.startswith(("v_readfirstlane", "v_readlane")): n = max(n, 1)
            if p.kind == "trans": n = max(n, 1)
        if sw & c.r:
            if valu_c: n = max(n, 2)
            if is_vm(c): n = max(n, 5)
        if p.op.startswith("v_dot2") and (valu_c or mf_c or mem_c) and vw & (c.r | c.w):
            same_acc = c.op == p.op and c.w == p.w
            if not same_acc: n = max(n, 3)
    if mf_p:
        big = p.kind == "mfma32"
        if (valu_c or mem_c) and p.w & (c.r | c.w): n = max(n, 12 if big else 8)
        if mf_c:
            if p.w & c.ab: n = max(n, 12 if big else 8)
            if p.w & c.srcc and not (c.srcc == p.w and c.kind == p.kind): n = max(n, 10 if big else 6)
            if p.w & c.w and not (p.w & c.srcc): n = max(n, 12 if big else 8)
        if valu_c and p.srcc & c.w: n = max(n, 7 if big else 3)
    if p.kind == "salu" and ("s", "m0") in p.w and c.kind == "vm_dma": n = max(n, 1)
    if p.wide_store and p.data & c.w: n = max(n, 2)
    return n


def pad_hazards(stream):
    out = S()
    for c in stream:
        if c.kind != "label":
            dist, need_n = 0, 0
            for p in reversed(out):
                if dist >= 12:
                    break
                need_n = max(need_n, required(p, c) - dist)
                dist += states(p)
            if need_n > 0:
                out.append(I(f"s_nop {need_n - 1}"))
        out.append(c)
    return out


def text_of(stream):
    return "".join((i.text if i.kind == "label" else "  " + i.text) + "\n" for i in stream)


def finish(stream):
    return pad_hazards(resolve(stream))
```

```python
import math, struct, sys
from asmlib import *

KNAME = "gated_mix__linear_attn_block__mixer_gmlp__prompt_kernel"

import os
ZTS = int(os.environ.get('ZTS', 65536))
ZWS = int(os.environ.get('ZWS', 16384))
Z2F = 0x0030000
Z1F = 0x0400000
AF  = 0x0800000
WF  = 0x1000000
KVT_G = 0x1200000
ST  = 0x1240000
GG  = 0x12C0000
FL  = 0x1300000
F_ZERO, F_REP, EPOCH = FL, FL + 0x1000, FL + 0x2000
F_Z2, F_Z1, F_KV, F_O, F_U = (FL + k * 0x10000 for k in (1, 2, 3, 4, 5))
STAMP = 0x1400000
WS_BYTES = 0x2000000
OOB = 0x40000000
TAG_INC = 0x9E3779B1

XR = 0
WR = 65536
PKV, PKV_P = 65536, 272
KVL, KVL_P = 109568, 176
KVL_DUMMY = KVL + 90*KVL_P
TB_P = 136
LDS_BYTES = 163840

SX, SW, SWS, SSP, SOUT, SBS, SGW = 4, 8, 12, 16, 20, 24, 28
P_X, P_WQKV, P_WO, P_WIN, P_WSP, P_BSP, P_WOUT, P_GW, P_OUT, P_DBG, P_WS = 36, 38, 40, 44, 46, 48, 50, 52, 54, 56, 58
sWAVE, sRB, sROLE, sTAG, sTB, sFG, sNG, sRSEL = 60, 61, 62, 63, 64, 65, 66, 67
sRG = 68
sCNT = 69
sROW = 70
sAP, sT0, sT1, sT2, sT3, sT4, sT5 = 74, 75, 76, 77, 78, 79, 80
sXB, sWB, sXO, sWO = 81, 82, 83, 84
sFT0, sFT6, sPM0, sPM6 = 85, 86, 87, 88
sAQ, sDEF, sOOB6, sAR = 89, 90, 91, 95
sSTAMP = 98

vTID, vLANE, vTAG, vL0 = 0, 1, 2, 3
vB0, vL16X, vL16T, vP, vPA = 10, 12, 13, 14, 15
vZ1, vZ6, vGA, vBS, vG, vPA2 = 248, 249, 250, 251, 252, 254
XB, GB, Z1R, TU, TG, BB, A2 = 16, 40, 72, 88, 92, 96, 168
RED1, RED2 = 0, 98304
vRW, vRR, vC1, vC2 = 4, 7, 8, 9
sAFM = (40, 41, 50, 51)
sROTB = 95
sB0, sB2, sPZ, sPZD, sTT, sOOB3, sWFD, sWFE, sAFD, sAFE, sFO, sFUW, sFUR, sOUT = 36, 37, 38, 39, 42, 43, 44, 45, 46, 47, 48, 49, 55, 58

def srd(n): return f"s[{n}:{n+3}]"
def vr(a, n): return f"v[{a}:{a+n-1}]" if n > 1 else f"v{a}"
def ar(a, n): return f"a[{a}:{a+n-1}]"
def ablk(c): return 32*((c + 5) % 8)
def areg(k): return ar(160 + 4*k if k < 24 else 4*(k - 24), 4)
def wfreg(i): return areg(i)
def oreg(i): return vr(96 + 4*i, 4) if i < 16 else areg(44 + i)
def ureg(i): return vr(16 + 4*i, 4) if i < 20 else (vr(160 + 4*(i - 20), 4) if i < 22 else vr(96 + 4*(i - 22), 4))

def f32(x): return "0x%08x" % struct.unpack("<I", struct.pack("<f", x))[0]

LOG2E = math.log2(math.e)
GC1 = -2.0 * LOG2E * math.sqrt(2.0 / math.pi)
GC2 = GC1 * 0.044715


class Gen:
    def __init__(self, **opt):
        self.o = dict(spin=1 << 20, stamps=False, sleep=4, R=6, fill1=6, pacef=0.8, pacemax=1.0, npre=4, npreq=5,
                      zpace=19, zb4=9, zn1=44, zn2=72, zflag=120, zsched=1, z1at=8, z1c=12, z1w=100,
                      qpace=11, qflag=4, qo1=4, qo2=20, qo3=36, qo4=100,
                      rot1=0, rota=0, rote=1, touch=1, NB0=8, NBZ=24, NBQ=20, wf2=1, fillc=3, fillc2=3, fillc3=4, cpoll=60, clat=70, cbar=24, nwf=25,
                      tpace=16, tw1=12, upoll=10, tahead=10, drate=2, ebar=12, fille=2)
        self.o.update(opt)
        self.retry = []
        self.nlabel = 0

    def stamp(self, s, idx):
        if not self.o["stamps"] or (self.o.get("ends") and idx not in (0, 13)):
            return
        s(f"{'s_memtime' if self.o['stamps'] == 2 else 's_memrealtime'} s[{sSTAMP}:{sSTAMP+1}]")
        if self.o["stamps"] == 3:
            s(f"s_or_b32 s{sSTAMP+2}, s2, s{sWAVE}\ns_cmp_eq_u32 s{sSTAMP+2}, 0\ns_cselect_b32 s{sSTAMP+2}, 0, {OOB}")
            raise NotImplementedError
            return
        s(f"s_lshl_b32 s{sSTAMP+2}, s2, 2\ns_add_u32 s{sSTAMP+2}, s{sSTAMP+2}, s{sWAVE}\ns_lshl_b32 s{sSTAMP+2}, s{sSTAMP+2}, 7")
        s(f"s_add_u32 s{sSTAMP+2}, s{sSTAMP+2}, {STAMP + 4*idx}")
        s(f"v_mov_b32 v255, s{sSTAMP}")
        s(f"buffer_store_dword v255, v{vL0}, {srd(SWS)}, s{sSTAMP+2} offen")

    LPAIRS = (24, 26, 28, 30, 32, 52, 56)

    def lstamp(self, s, name):
        names = self.o.get("ls") or ()
        if name in names:
            p = self.LPAIRS[names.index(name)]
            s.append(I(f"s_memtime s[{p}:{p+1}]", kind="sopp"))

    def lflush(self, s):
        names = self.o.get("ls") or ()
        if not names: return
        s.wait_all()
        s(f"s_lshl_b32 s{sSTAMP+2}, s2, 2\ns_add_u32 s{sSTAMP+2}, s{sSTAMP+2}, s{sWAVE}\ns_lshl_b32 s{sSTAMP+2}, s{sSTAMP+2}, 7\ns_or_b32 s{sSTAMP+2}, s{sSTAMP+2}, {STAMP}")
        for k in range(len(names)):
            s(f"v_mov_b32 v255, s{self.LPAIRS[k]}\nbuffer_store_dword v255, v{vL0}, {srd(SWS)}, s{sSTAMP+2} offen offset:{64 + 4*k}")

    def flag(self, s, soff):
        return s(f"buffer_store_dword v{vTAG}, v{vL0}, {srd(SWS)}, s{soff} offen sc1")

    def check(self, s, loads, test):
        k = self.nlabel; self.nlabel += 1
        s(test)
        s.glue()
        s(f"s_cbranch_vccnz L_retry{k}")
        s.glue()
        s(f"L_back{k}:")
        r = S()
        r(f"L_retry{k}:\ns_mov_b32 s{sCNT}, 0\nL_loop{k}:\ns_sleep {self.o['sleep']}\ns_mov_b64 exec, vcc")
        r(loads)
        r("s_mov_b64 exec, -1")
        r.wait_all(vm=True, lg=False)
        r(test)
        r(f"s_add_u32 s{sCNT}, s{sCNT}, 1\ns_cmp_gt_u32 s{sCNT}, {self.o['spin']}\ns_cbranch_scc1 L_back{k}\ns_cbranch_vccnz L_loop{k}\ns_branch L_back{k}")
        self.retry.append(r)

    def poll(self, s, vdst, vaddr):
        ld = f"buffer_load_dword v{vdst}, v{vaddr}, {srd(SWS)}, 0 offen sc1"
        s(ld)
        return lambda t: self.check(t, ld, f"v_cmp_ne_u32 vcc, s{sTAG}, v{vdst}")

    def gelu(self, s, regs, tmp, c1, c2, stats=None):
        for i in range(0, len(regs), 4):
            g = list(zip(regs[i:i+4], tmp))
            for x, t in g: s(f"v_mul_f32 v{t}, v{x}, v{x}")
            for x, t in g: s(f"v_fma_f32 v{t}, v{t}, v{c2}, v{c1}")
            for x, t in g: s(f"v_mul_f32 v{t}, v{t}, v{x}")
            for x, t in g: s(f"v_exp_f32 v{t}, v{t}")
            for x, t in g: s(f"v_add_f32 v{t}, 1.0, v{t}")
            for x, t in g: s(f"v_rcp_f32 v{t}, v{t}")
            for x, t in g: s(f"v_mul_f32 v{x}, v{x}, v{t}")
            if stats:
                for x, t in g:
                    s(f"v_add_f32 v{stats[0]}, v{stats[0]}, v{x}")
                    s(f"v_fmac_f32 v{stats[1]}, v{x}, v{x}")

    def phi(self, s, regs, tmp, sl2e, seps, mask=None):
        for i in range(0, len(regs), 4):
            g = list(zip(regs[i:i+4], tmp[:4], tmp[4:8]))
            for x, t, u in g: s(f"v_mul_f32 v{t}, s{sl2e}, v{x}")
            for x, t, u in g: s(f"v_exp_f32_e64 v{t}, v{t} clamp")
            if mask is None:
                for x, t, u in g: s(f"v_max_f32 v{x}, s{seps}, v{x}")
                for x, t, u in g: s(f"v_add_f32 v{x}, v{x}, v{t}")
            else:
                for x, t, u in g: s(f"v_max_f32 v{u}, s{seps}, v{x}")
                for x, t, u in g: s(f"v_add_f32 v{u}, v{u}, v{t}")
                for x, t, u in g: s(f"v_cndmask_b32_e64 v{x}, v{x}, v{u}, s[{mask}:{mask+1}]")

    def prologue(self):
        s = S()
        s(f"""
        s_cmp_ge_u32 s2, 256
        s_cbranch_scc1 L_end
        s_load_dwordx16 s[36:51], s[0:1], 0
        s_load_dwordx8 s[52:59], s[0:1], 64
        s_getpc_b64 s[32:33]
        L_pc:
        s_lshr_b32 s3, s2, 3
        s_and_b32 s{sT0}, s3, 1
        s_lshl_b32 s{sT0}, s{sT0}, 15
        v_lshlrev_b32 v238, 7, v0
        v_add_u32 v238, s{sT0}, v238
        s_mov_b32 s{sT1}, L_code_end-L_pc-4
        v_min_u32 v238, s{sT1}, v238
        global_load_dword v239, v238, s[32:33]
        v_lshrrev_b32 v4, 6, v0
        v_and_b32 v{vLANE}, 63, v0
        s_and_b32 s{sT0}, s2, 7
        v_readfirstlane_b32 s{sWAVE}, v4
        s_and_b32 s{sT1}, s{sT0}, 1
        s_lshr_b32 s{sT2}, s{sT0}, 1
        s_and_b32 s{sT3}, s3, 7
        s_lshr_b32 s{sRSEL}, s3, 3
        s_lshl_b32 s{sRB}, s{sT1}, 3
        s_add_u32 s{sRB}, s{sRB}, s{sT3}
        s_lshl_b32 s{sROLE}, s{sT2}, 1
        s_and_b32 s{sT4}, s{sRSEL}, 1
        s_add_u32 s{sROLE}, s{sROLE}, s{sT4}
        s_lshl_b32 s{sTB}, s{sT2}, 3
        s_add_u32 s{sTB}, s{sTB}, s{sT3}
        s_lshl_b32 s{sNG}, s{sT1}, 2
        s_add_u32 s{sNG}, s{sNG}, s{sRSEL}
        s_lshl_b32 s{sFG}, s{sT1}, 1
        s_add_u32 s{sFG}, s{sFG}, s{sT4}
        s_lshl_b32 s{sFG}, s{sFG}, 1
        s_lshr_b32 s{sT4}, s{sRSEL}, 1
        s_add_u32 s{sFG}, s{sFG}, s{sT4}
        s_lshl_b32 s{sRG}, s{sRB}, 2
        s_add_u32 s{sRG}, s{sRG}, s{sWAVE}
        v_cmp_eq_u32 vcc, 0, v{vLANE}
        v_mov_b32 v5, {OOB}
        v_cndmask_b32_e64 v{vL0}, v5, 0, vcc
        """)
        s(f"""
        v_lshrrev_b32 v8, 3, v{vLANE}
        v_and_b32 v9, 7, v{vLANE}
        v_lshrrev_b32 v10, 4, v{vLANE}
        v_xor_b32 v9, v9, v10
        v_lshlrev_b32 v9, 4, v9
        s_lshl_b32 s{sT0}, s{sRG}, 5
        v_add_u32 v8, s{sT0}, v8
        v_mul_u32_u24 v8, 1280, v8
        v_add_u32 v4, v8, v9
        v_xor_b32 v9, 64, v9
        v_add3_u32 v5, v8, v9, 0
        v_add_u32 v5, {10240-1024}, v5
        v_add_u32 v6, {2*(10240-1024)}, v4
        v_add_u32 v7, {2*(10240-1024)}, v5
        s_lshl_b32 s{sXB}, s{sWAVE}, 14
        s_mul_i32 s{sT0}, s{sRSEL}, 5
        s_add_u32 s{sT0}, s{sT0}, 1
        s_lshr_b32 s{sT0}, s{sT0}, 1
        s_add_u32 s{sT0}, s{sT0}, s{sT3}
        s_mul_i32 s{sT0}, s{sT0}, {self.o['rot1']}
        s_sub_u32 s{sT1}, s{sT0}, 10
        s_cmp_ge_u32 s{sT0}, 10
        s_cselect_b32 s{sT5}, s{sT1}, s{sT0}
        s_lshl_b32 s{sXO}, s{sT5}, 7
        s_sub_u32 s{sXO}, s{sXO}, 128
        """)
        for n, p, size in ((SX, P_X, 2048*1280), (SWS, P_WS, WS_BYTES), (SSP, P_WSP, 2048*4096), (SOUT, P_OUT, 2048*1280),
                           (SBS, P_BSP, 4096), (SGW, P_GW, 1280)):
            s(f"s_mov_b32 s{n}, s{p}\ns_mov_b32 s{n+1}, s{p+1}\ns_mov_b32 s{n+2}, {size}\ns_mov_b32 s{n+3}, 0x20000")
        s(f"""
        s_cmp_lt_u32 s{sRSEL}, 2
        s_cselect_b32 s{SW}, s{P_WQKV}, s{P_WIN}
        s_cselect_b32 s{SW+1}, s{P_WQKV+1}, s{P_WIN+1}
        s_mov_b32 s{sT0}, {640*3456}
        s_cselect_b32 s{SW+2}, {640*3840}, s{sT0}
        s_mov_b32 s{SW+3}, 0x20000
        """)
        if self.o["stamps"] == 3:
            s(f"s_mov_b32 s32, s{P_DBG}\ns_mov_b32 s33, s{P_DBG+1}\ns_mov_b32 s34, 256\ns_mov_b32 s35, 0x20000")
        self.stamp(s, 0)
        s(f"""
        s_cmp_lt_u32 s{sRSEL}, 2
        s_cbranch_scc1 L_qkv
        s_cmp_eq_u32 s{sROLE}, 7
        s_cbranch_scc1 L_misc
        """)
        return s

    def load_tag(self, s):
        s(f"v_mov_b32 v{vTAG}, {EPOCH}")
        s(f"buffer_load_dword v{vTAG}, v{vTAG}, {srd(SWS)}, 0 offen sc1")

    def make_tag(self, s):
        s(f"v_add_u32 v{vTAG}, {TAG_INC}, v{vTAG}\nv_readfirstlane_b32 s{sTAG}, v{vTAG}")

    def x_read_addrs(self, s):
        s(f"""
        v_and_b32 v28, 31, v{vLANE}
        v_lshrrev_b32 v29, 5, v{vLANE}
        v_bfe_u32 v30, v{vLANE}, 1, 3
        v_xor_b32 v29, v29, v30
        v_lshlrev_b32 v29, 4, v29
        v_lshl_add_u32 v8, v28, 7, v29
        v_add_u32 v8, s{sXB}, v8
        v_xor_b32 v9, 32, v8
        v_xor_b32 v10, 64, v8
        v_xor_b32 v11, 96, v8
        """)

    def x_dma(self, g):
        u = []
        for j in range(4):
            t = S()
            if j == 0:
                t(f"s_add_u32 m0, s{sXB}, {XR + (g % 4)*4096}\ns_add_u32 s{sXO}, s{sXO}, 128\ns_cmp_eq_u32 s{sXO}, 1280\ns_cselect_b32 s{sXO}, 0, s{sXO}")
            t(f"buffer_load_dwordx4 v{4+j}, {srd(SX)}, s{sXO} offen offset:{j*1024} lds")
            u.append(t)
        return u

    def stage1(self, items, nstage, depth, w_dma, order, pre0, pre, preb, extra={}):
        o = self.o
        R = o["R"]
        FB = 40
        s = S()
        last = {}
        queue, bars, xrd, issued = [], {}, {}, set()
        def enqueue(us, key=None):
            queue.extend(us)
            if key: last[key] = us[-1][-1]
        def pop():
            t = queue.pop(0); s.extend(t); issued.add(id(t[-1]))
        def need(key):
            while id(last[key]) not in issued: pop()
            return last[key]
        npre, order = order
        for n, (kind, g) in enumerate(order):
            enqueue(self.x_dma(g) if kind == "x" else w_dma(g), (kind, g))
            if n < npre:
                while queue: pop()
            if n == 0: s.extend(pre0)
            if n == 1:
                self.load_tag(s); s.extend(pre)
        length = {}
        for it in items: length[it["g"]] = length.get(it["g"], 0) + 1
        pace = [0.0, 0.0]
        rlast = {}
        def reads(n):
            it = items[n]; g = it["g"]; j = it["j"]
            newx = it["chunk"] == 0 and it["first_tile"] and j % 4 == 0
            neww = g not in bars
            if newx or neww:
                tg = ([need(("x", j // 4))] if newx else []) + ([need(("w", g))] if neww else [])
                if neww and it["chunk"] > 0:
                    while queue: pop()
                s.wait(*tg)
            if neww:
                bars[g] = s("s_barrier")
                self.lstamp(s, f"a{g}")
                if g == 1: self.make_tag(s)
                if g >= 2 and g + depth - 2 < nstage: enqueue(w_dma(g + depth - 2), ("w", g + depth - 2))
            if newx and 1 <= j // 4 < 7:
                i = j // 4
                us = self.x_dma(i + 3); us[0].insert(0, I("wait", kind="wait", tgt=[xrd[i - 1]])); enqueue(us, ("x", i + 3))
            if neww and g in extra: enqueue(extra[g](xrd))
            if newx or neww:
                span = length[g]
                pace[0] = min(o["pacemax"], len(queue) / (span * o["pacef"])); pace[1] = 1.0
            if it["chunk"] == 0 and it["first_tile"]:
                xrd[j // 4] = s(f"ds_read_b128 {ar(4*j, 4)}, v{8 + (j & 3)} offset:{XR + ((j // 4) % 4)*4096}")
            for t in it["reads"](FB + 4*(n % R)):
                rlast[n] = s(t)
        for n in range(R):
            reads(n)
        qrest = []
        for n, it in enumerate(items):
            if it["chunk"] == 1 and items[n-1]["chunk"] == 0:
                s.mark("chunk2"); qrest = list(queue); issued.update(id(t[-1]) for t in queue); queue.clear()
            b = vr(FB + 4*(n % R), 4); x = ar(4*it["j"], 4); acc = vr(it["acc"], 16)
            c = "0" if it["init"] else acc
            if n % 2 == 0: s.wait(rlast[n + 1])
            s(f"v_mfma_f32_32x32x16_bf16 {acc}, {b}, {x}, {c}" if it["tr"] else f"v_mfma_f32_32x32x16_bf16 {acc}, {x}, {b}, {c}")
            if n + R < len(items):
                reads(n + R)
            while queue and pace[1] >= 1.0:
                pop(); pace[1] -= 1.0
            pace[1] += pace[0]
        while queue: pop()
        k = next((i for i, x in enumerate(s) if x.kind == "mark" and x.text == "chunk2"), len(s))
        c1, left = interleave(S(s[:k]), autoglue(preb), o["fill1"])
        assert not left
        return c1, qrest, S(s[k+1:]), bars

    def tr_lane(self, s, vr_, vc, vch, vh):
        s(f"""
        v_bfe_u32 v{vr_}, v{vLANE}, 2, 2
        v_and_b32 v{vc}, 3, v{vLANE}
        v_bfe_u32 v{vch}, v{vLANE}, 4, 1
        v_lshrrev_b32 v{vh}, 5, v{vLANE}
        """)

    def a_setup_src(self, s):
        s(f"""
        v_lshrrev_b32 v4, 3, v{vLANE}
        v_and_b32 v5, 7, v{vLANE}
        v_lshrrev_b32 v6, 4, v{vLANE}
        v_xor_b32 v5, v5, v6
        v_lshlrev_b32 v5, 4, v5
        v_lshl_add_u32 v4, v4, 12, v5
        v_xor_b32 v5, 64, v4
        v_add_u32 v5, {8*4096-1024}, v5
        """)

    def a_setup_rows(self, s):
        s(f"""
        s_lshl_b32 s{sAQ}, s{sWAVE}, 13
        s_add_u32 s{sAQ}, s{sAQ}, 131072
        s_lshl_b32 s52, s{sTB}, 18
        s_lshl_b32 s53, s{sWAVE}, 10
        s_add_u32 s52, s52, s53
        s_lshr_b32 s53, s{sRSEL}, 1
        s_and_b32 s54, s{sRSEL}, 1
        s_lshl_b32 s54, s54, 1
        s_or_b32 s53, s53, s54
        s_mul_i32 s53, s53, {self.o['rota']}
        s_lshl_b32 s{sROTB}, s53, 12
        s_lshl_b32 s53, s53, 8
        s_add_u32 s52, s52, s53
        """)
        for m in range(4):
            s(f"s_add_u32 s53, s{sWAVE}, {m}\ns_and_b32 s53, s53, 3\ns_lshl_b32 s53, s53, 16\ns_add_u32 s{sROW+m}, s52, s53")

    def a_setup_rd(self, s):
        s(f"""
        v_and_b32 v10, 15, v{vLANE}
        v_lshrrev_b32 v11, 1, v10
        v_lshrrev_b32 v6, 4, v{vLANE}
        v_xor_b32 v11, v11, v6
        v_lshlrev_b32 v11, 4, v11
        v_lshl_add_u32 v10, v10, 7, v11
        v_add_u32 v6, s{sXB}, v10
        v_xor_b32 v7, 64, v6
        v_add_u32 v8, s{sAQ}, v10
        v_xor_b32 v9, 64, v8
        """)

    def a_pipe(self):
        slots = {"P0": (sXB, 6, 0), "P1": (sXB, 6, 8192), "Q": (sAQ, 8, 0)}
        where, dm, busy = {}, {}, {}
        def dma(c, slot, after=None):
            sb, _, off = slots[slot]
            where[c] = slot
            u = []
            for m in range(4):
                t = S()
                if m == 0: t.wait(busy.get(slot), after)
                t(f"s_add_u32 m0, s{sb}, {off + m*2048}\ns_xor_b32 s{sXO}, s{sROW+m}, {c*128}")
                t(f"buffer_load_dwordx4 v4, {srd(SSP)}, s{sXO} offen lds")
                u.append(t)
                t = S()
                dm[c] = t(f"buffer_load_dwordx4 v5, {srd(SSP)}, s{sXO} offen offset:1024 lds")
                if m == 3: self.lstamp(t, f"di{c}")
                u.append(t)
            return u
        def rd(c):
            _, vb, off = slots[where[c]]
            u = []
            for m in range(4):
                for jj in range(2):
                    t = S()
                    if m == 0 and jj == 0:
                        self.lstamp(t, f"rw{c}"); t.wait(dm[c]); self.lstamp(t, f"rd{c}")
                    busy[where[c]] = t(f"ds_read_b128 {ar(ablk(c) + 16*jj + 4*m, 4)}, v{vb+jj} offset:{off + m*2048}")
                    u.append(t)
            return u
        return dma, rd

    def role_z(self):
        o = self.o
        pre0 = S()
        pre0(f"""
        v_lshrrev_b32 v28, 4, v{vLANE}
        v_bfe_u32 v29, v{vLANE}, 2, 2
        v_xor_b32 v29, v29, v28
        v_and_b32 v30, 3, v{vLANE}
        v_lshlrev_b32 v30, 4, v30
        v_lshl_add_u32 v29, v29, 6, v30
        s_lshl_b32 s{sT0}, s{sWAVE}, 4
        v_add_u32 v28, s{sT0}, v28
        v_mul_u32_u24 v28, 3456, v28
        s_lshl_b32 s{sT0}, s{sROLE}, 8
        s_add_u32 s{sT0}, s{sT0}, 1664
        s_mul_i32 s{sWO}, s{sT5}, {64*3456}
        s_sub_u32 s{sWO}, s{sWO}, {64*3456}
        v_add3_u32 v12, v28, v29, s{sT0}
        v_add_u32 v13, {4*3456-1024}, v12
        v_add_u32 v14, {2*(4*3456-1024)}, v12
        v_add_u32 v15, {3*(4*3456-1024)}, v12
        s_lshl_b32 s{sWB}, s{sWAVE}, 12
        s_add_u32 s{sWB}, s{sWB}, {WR}
        """)
        def w_dma(g):
            u = []
            for j in range(4):
                t = S()
                if j == 0:
                    t(f"s_add_u32 m0, s{sWB}, {(g % 4)*16384}\ns_add_u32 s{sWO}, s{sWO}, {64*3456}\ns_cmp_eq_u32 s{sWO}, {640*3456}\ns_cselect_b32 s{sWO}, 0, s{sWO}")
                if g == 10: t(f"v_subrev_u32 v{12+j}, 1664, v{12+j}")
                t(f"buffer_load_dwordx4 v{12+j}, {srd(SW)}, s{sWO} offen offset:{j*1024} lds")
                u.append(t)
            return u
        Z2A, Z1A = 128, 64
        C1, C2, S1, S2 = 16, 17, 36, 38
        vL16, vL16b, vTW, vTR, vS0, vS1, vY0, vY1 = 34, 35, 26, 27, 32, 33, 18, 19
        pre = S()
        self.x_read_addrs(pre)
        self.tr_lane(pre, 28, 29, 30, 31)
        pre(f"""
        v_lshl_add_u32 v31, v31, 3, v28
        v_lshlrev_b32 v31, 8, v31
        v_lshl_add_u32 v31, v30, 5, v31
        v_lshl_add_u32 v31, v29, 3, v31
        v_lshl_add_u32 v31, v28, 6, v31
        v_add_u32 v22, {WR}, v31
        v_xor_b32 v23, 64, v22
        v_xor_b32 v24, 128, v22
        v_xor_b32 v25, 192, v22
        """)
        preb = S()
        self.late_setup(preb)
        preb(f"""
        v_mov_b32 v{C1}, {f32(GC1)}
        v_mov_b32 v{C2}, {f32(GC2)}
        v_mov_b32 v{S1}, 0
        v_mov_b32 v{S2}, 0
        v_lshlrev_b32 v{vL16}, 4, v{vLANE}
        v_add_u32 v{vL16b}, 4096, v{vL16}
        v_and_b32 v28, 31, v{vLANE}
        v_lshrrev_b32 v29, 5, v{vLANE}
        v_mul_u32_u24 v30, {TB_P}, v28
        v_lshl_add_u32 v30, v29, 3, v30
        v_add_u32 v{vTW}, s{sAQ}, v30
        v_lshrrev_b32 v30, 4, v{vLANE}
        v_bfe_u32 v31, v{vLANE}, 2, 2
        v_lshl_add_u32 v30, v30, 3, v31
        v_mul_u32_u24 v30, {TB_P}, v30
        v_and_b32 v31, 3, v{vLANE}
        v_lshl_add_u32 v30, v31, 3, v30
        v_add_u32 v{vTR}, s{sAQ}, v30
        v_lshrrev_b32 v30, 4, v28
        s_lshl_b32 s{sT0}, s{sRG}, 1
        v_add_u32 v30, s{sT0}, v30
        v_mul_u32_u24 v30, {27*1024}, v30
        v_and_b32 v31, 15, v28
        v_lshl_add_u32 v31, v29, 4, v31
        v_lshl_add_u32 v30, v31, 4, v30
        s_lshl_b32 s{sT0}, s{sROLE}, 12
        s_add_u32 s{sT0}, s{sT0}, {Z1F}
        v_add_u32 v{vY0}, s{sT0}, v30
        s_cmp_eq_u32 s{sROLE}, 6
        s_cselect_b32 s{sT1}, {OOB}, 0
        v_add_u32 v{vY1}, s{sT1}, v{vY0}
        s_and_b32 s{sT0}, s{sRG}, 15
        s_lshl_b32 s{sT0}, s{sT0}, 10
        s_lshr_b32 s{sT1}, s{sRG}, 4
        s_mul_i32 s{sT1}, s{sT1}, {ZWS}
        s_add_u32 s{sT0}, s{sT0}, s{sT1}
        s_mul_i32 s{sT1}, s{sROLE}, {8*ZTS}
        s_add_u32 s{sT0}, s{sT0}, s{sT1}
        s_add_u32 s{sT0}, s{sT0}, {Z2F - 2*ZTS}
        v_add_u32 v{vS1}, s{sT0}, v{vL16}
        s_cmp_eq_u32 s{sROLE}, 0
        s_cselect_b32 s{sT1}, {OOB}, 0
        s_cselect_b32 s{sT2}, 0, 1.0
        v_add_u32 v{vS0}, s{sT1}, v{vS1}
        s_lshl_b32 s{sT3}, s{sRG}, 13
        s_add_u32 s{sT3}, s{sT3}, {ST}
        s_lshl_b32 s{sT4}, s{sROLE}, 10
        s_add_u32 s{sT4}, s{sT4}, s{sT3}
        s_lshl_b32 s{sT5}, s{sROLE}, 13
        s_lshl_b32 s{sT0}, s{sRG}, 7
        s_add_u32 s{sT5}, s{sT5}, s{sT0}
        s_add_u32 s{sDEF}, s{sT5}, {F_Z1}
        s_add_u32 s{sT5}, s{sT5}, {F_Z2}
        """)
        items = []
        for g in range(20):
            for ks in range(4):
                for t in range(4):
                    off = (g % 4)*16384 + ks*4096
                    items.append(dict(g=g, j=(g % 10)*4 + ks, first_tile=t == 0, chunk=g // 10, acc=(Z2A, Z1A)[g // 10] + 16*t,
                                      init=(g % 10 == 0 and ks == 0), tr=True,
                                      reads=lambda b, t=t, off=off: [f"ds_read_b64_tr_b16 {vr(b,2)}, v{22+t} offset:{off}",
                                                                     f"ds_read_b64_tr_b16 {vr(b+2,2)}, v{22+t} offset:{off+1024}"]))
        dma, rd = self.a_pipe()
        grp = lambda us: [S(sum((list(u) for u in us), []))]
        a01 = dma(0, "P0") + dma(1, "P1") + dma(2, "Q")
        a01 += grp(rd(0)) + dma(3, "P0")
        held = {}
        def half(c, slot, h):
            if h == 0: held[c] = dma(c, slot)
            return held[c][4*h:4*h+4]
        if o["zsched"] == 0:
            extra = {11: lambda x: rd(1) + half(4, "P1", 0), 12: lambda x: rd(2) + half(4, "P1", 1), 13: lambda x: rd(3) + half(5, "P0", 0),
                     14: lambda x: half(5, "P0", 1), 15: lambda x: rd(4) + half(6, "P1", 0), 16: lambda x: half(6, "P1", 1),
                     17: lambda x: rd(5) + half(7, "P0", 0), 18: lambda x: half(7, "P0", 1), 19: lambda x: rd(6)}
            tailq = lambda: []
            tailr = lambda: rd(7)
        else:
            extra = {11: lambda x: rd(1) + half(4, "P1", 0), 12: lambda x: rd(2) + half(4, "P1", 1), 13: lambda x: rd(3) + half(5, "P0", 0),
                     17: lambda x: half(5, "P0", 1), 18: lambda x: rd(4) + dma(6, "P1"), 19: lambda x: rd(5) + dma(7, "P0")}
            tailq = lambda: []
            tailr = lambda: rd(6) + rd(7)
        order = (o["npre"], [(k, g) for g in range(4) for k in "xw"])
        c1, qrest, c2, bars = self.stage1(items, 20, 4, w_dma, order, pre0, pre, preb, extra)
        s = S(c1); self.stamp(s, 1)
        self.a_setup_src(s); self.a_setup_rd(s)
        tmp = [192, 193, 194, 195]
        G0, F0 = 196, 224
        p = S()
        for t in range(4):
            self.gelu(p, list(range(Z2A + 16*t, Z2A + 16*t + 16)), tmp, C1, C2, stats=(S1, S2))
            if t == 0: p(f"v_mul_f32 v{S1}, s{sT2}, v{S1}\nv_mul_f32 v{S2}, s{sT2}, v{S2}")
        p(f"v_mov_b32 v{S1+1}, v{vTAG}\nv_mov_b32 v{S2+1}, v{vTAG}")
        p, left = spread(p, qrest + a01, o["zpace"])
        s.extend(p)
        s(f"buffer_store_dwordx4 {vr(S1,4)}, v{vL16}, {srd(SWS)}, s{sT4} offen sc1")
        for t in left: s.extend(t)
        self.stamp(s, 2)
        f = S()
        lds_ = "\n".join(f"buffer_load_dwordx4 {vr(G0+4*c,4)}, v{vL16 if c < 4 else vL16b}, {srd(SWS)}, s{sT3} offen offset:{(c & 3)*1024} sc1" for c in range(7))
        f.at(o["zn1"])
        for l in lds_.split("\n"): f(l).cost = 5
        f.at(o["zn2"])
        test = "v_mov_b32 v192, 0\n" + "".join(
            f"v_xor_b32 v193, s{sTAG}, v{G0+4*c+1}\nv_xor_b32 v194, s{sTAG}, v{G0+4*c+3}\nv_or3_b32 v192, v192, v193, v194\n" for c in range(7)) + "v_cmp_ne_u32 vcc, 0, v192"
        f.bud(o["zb4"])
        self.lstamp(f, "c0")
        self.check(f, lds_, test)
        self.lstamp(f, "c1")
        for c in range(1, 7):
            f(f"v_add_f32 v{G0}, v{G0}, v{G0+4*c}\nv_add_f32 v{G0+2}, v{G0+2}, v{G0+4*c+2}")
        f(f"""
        v_mov_b32 v{G0+1}, v{G0}
        v_mov_b32 v{G0+3}, v{G0+2}
        v_permlane32_swap_b32 v{G0}, v{G0+1}
        v_permlane32_swap_b32 v{G0+2}, v{G0+3}
        v_add_f32 v{G0}, v{G0}, v{G0+1}
        v_add_f32 v{G0+2}, v{G0+2}, v{G0+3}
        v_mul_f32 v{G0}, {f32(1/864)}, v{G0}
        v_mul_f32 v{G0+2}, {f32(1/864)}, v{G0+2}
        v_fma_f32 v{G0+2}, -v{G0}, v{G0}, v{G0+2}
        v_max_f32 v{G0+2}, 0, v{G0+2}
        v_add_f32 v{G0+2}, {f32(1e-5)}, v{G0+2}
        v_rsq_f32 v{G0+2}, v{G0+2}
        v_mul_f32 v{G0}, v{G0}, v{G0+2}
        """)
        f.mark("tb")
        fb = lambda t, j: (F0 if t < 2 else 200) + 8*(t & 1) + 4*j
        def z_store(t, j):
            f(f"s_mov_b32 s{sT0}, {(2*t + j)*ZTS}")
            return f(f"buffer_store_dwordx4 {vr(fb(t, j),4)}, v{vS0 if t == 0 else vS1}, {srd(SWS)}, s{sT0} offen sc1")
        for t in range(4):
            a = Z2A + 16*t
            for g in range(4):
                for r in range(4*g, 4*g + 4):
                    f(f"v_fma_f32 v{a+r}, v{a+r}, v{G0+2}, -v{G0}")
                f(f"v_cvt_pk_bf16_f32 v{a+4*g}, v{a+4*g}, v{a+4*g+1}\nv_cvt_pk_bf16_f32 v{a+4*g+1}, v{a+4*g+2}, v{a+4*g+3}")
                f(f"ds_write_b64 v{vTW}, {vr(a+4*g,2)} offset:{(t & 1)*64 + g*16}")
                if t and g in (1, 3): z_store(t - 1, g >> 1)
            for j in range(2):
                f(f"ds_read_b64_tr_b16 {vr(fb(t, j),2)}, v{vTR} offset:{(t & 1)*64 + j*32}")
                trl = f(f"ds_read_b64_tr_b16 {vr(fb(t, j)+2,2)}, v{vTR} offset:{(t & 1)*64 + j*32 + 4*TB_P}")
        z_store(3, 0); zst = z_store(3, 1)
        self.lstamp(f, "zs")
        f("s_nop 0").cost = o["zflag"]
        f.mark("zf")
        self.lstamp(f, "f0"); f.wait(zst); self.flag(f, sT5); self.lstamp(f, "f1")
        c2m, rest = interleave(c2, f, 5.5)
        pos = lambda pred: next(i for i, x in enumerate(list(c2m) + list(rest)) if pred(x))
        assert pos(lambda x: x is bars[13]) < pos(lambda x: x.kind == "mark" and x.text == "tb")
        s.extend(c2m); self.stamp(s, 3)
        s.extend(rest)
        for t in tailq(): s.extend(t)
        for t in range(4):
            a = Z1A + 16*t
            for k2, g in enumerate((0, 2, 1, 3)):
                s(f"v_cvt_pk_bf16_f32 v{a+2*k2}, v{a+4*g}, v{a+4*g+1}\nv_cvt_pk_bf16_f32 v{a+2*k2+1}, v{a+4*g+2}, v{a+4*g+3}")
                if k2 & 1: s(f"buffer_store_dwordx4 {vr(a+2*k2-2,4)}, v{vY1 if t == 3 else vY0}, {srd(SWS)}, 0 offen offset:{t*1024 + (k2 >> 1)*512} sc1")
        self.c_setup(s)
        s(self.z2_poll_text())
        for t in tailr(): s.extend(t)
        self.stamp(s, 5)
        s.wait_all(vm=False, lg=True)
        return s

    def role_qkv(self):
        o = self.o
        pre0 = S()
        pre0(f"s_mul_i32 s{sT0}, s{sROLE}, 160\ns_mul_i32 s{sT1}, s{sWAVE}, {8*3840}\ns_add_u32 s{sT1}, s{sT1}, s{sT0}")
        pre0(f"s_lshl_b32 s{sWB}, s{sWAVE}, 12\ns_add_u32 s{sWB}, s{sWB}, {WR}")
        pre0(f"s_mul_i32 s{sWO}, s{sT5}, {64*3840}\ns_sub_u32 s{sWO}, s{sWO}, {32*3840}")
        assert all((n*2185) >> 16 == n // 30 for n in range(256)) and all((n*26) >> 8 == n // 10 for n in range(30))
        for j in range(4):
            pre0(f"""
            v_add_u32 v28, {64*j}, v{vLANE}
            v_mul_u32_u24 v29, 2185, v28
            v_lshrrev_b32 v29, 16, v29
            v_mul_u32_u24 v30, 30, v29
            v_sub_u32 v28, v28, v30
            v_mul_u32_u24 v30, 26, v28
            v_lshrrev_b32 v30, 8, v30
            v_mul_u32_u24 v30, 1120, v30
            v_lshl_add_u32 v28, v28, 4, v30
            v_lshrrev_b32 v30, 1, v29
            v_and_b32 v29, 1, v29
            v_lshl_add_u32 v29, v29, 2, v30
            v_mul_u32_u24 v29, 3840, v29
            v_add3_u32 v28, v28, v29, s{sT1}
            v_subrev_u32 v{12+j}, {j*1024}, v28
            """)
        pre0(f"v_mov_b32 v28, {OOB}\nv_cmp_gt_u32 vcc, 48, v{vLANE}\nv_cndmask_b32 v15, v28, v15, vcc")
        def w_dma(g):
            u = []
            for j in range(4):
                t = S()
                if j == 0:
                    t(f"s_add_u32 m0, s{sWB}, {(g % 6)*16384}\ns_add_u32 s{sWO}, s{sWO}, {32*3840}\ns_cmp_eq_u32 s{sWO}, {640*3840}\ns_cselect_b32 s{sWO}, 0, s{sWO}")
                t(f"buffer_load_dwordx4 v{12+j}, {srd(SW)}, s{sWO} offen offset:{j*1024} lds")
                u.append(t)
            return u
        KA, QA, KV = 128, 64, 112
        sL2E, sEPS, sMASK, sHEAD, sKVT = 92, 94, 96, sT2, sT3
        vPW, vPM, vKA, vKB, vL4, vAT0, vAT1, vZA = 32, 33, 34, 35, 36, 37, 38, 39
        PQ, FR, NA, TBL, INV, GR = 176, 196, 212, 212, 228, 234
        vW0, vW1, vRD, vOA, vPK, vPD = 240, 241, 242, 243, 244, 245
        a, b, c, d, e = 230, 231, 232, 233, 234
        pre = S()
        self.x_read_addrs(pre)
        self.tr_lane(pre, 28, 29, 30, 31)
        pre(f"""
        v_mul_u32_u24 v32, 960, v28
        v_lshl_add_u32 v32, v31, 12, v32
        v_lshl_add_u32 v32, v29, 3, v32
        v_add_u32 v32, {WR}, v32
        v_lshl_add_u32 v22, v30, 5, v32
        v_add_u32 v23, 49152, v22
        v_mul_u32_u24 v33, 160, v30
        v_add_u32 v24, v33, v32
        v_add_u32 v25, 49152, v24
        """)
        preb = S()
        self.late_setup(preb)
        preb(f"""
        s_mov_b32 s{sL2E}, {f32(LOG2E)}
        s_mov_b32 s{sEPS}, {f32(1e-6)}
        s_mov_b32 s{sMASK}, 0xffff
        s_mov_b32 s{sMASK+1}, 0xffff
        s_lshl_b32 s{sHEAD}, s{sROLE}, 2
        s_add_u32 s{sHEAD}, s{sHEAD}, s{sWAVE}
        s_lshr_b32 s{sT0}, s{sHEAD}, 1
        s_lshl_b32 s{sT0}, s{sT0}, 7
        s_add_u32 s{sT0}, s{sT0}, {F_ZERO}
        v_mov_b32 v{vZA}, s{sT0}
        s_mul_i32 s{sKVT}, s{sHEAD}, 3072
        s_add_u32 s{sKVT}, s{sKVT}, {KVT_G}
        v_and_b32 v{a}, 31, v{vLANE}
        v_lshrrev_b32 v{b}, 5, v{vLANE}
        v_mul_u32_u24 v30, {PKV_P}, v{a}
        v_lshl_add_u32 v30, v{b}, 4, v30
        s_lshl_b32 s{sT0}, s{sWAVE}, 6
        s_add_u32 s{sT0}, s{sT0}, {PKV}
        v_add_u32 v{vPW}, s{sT0}, v30
        v_add_u32 v{vPM}, {64*PKV_P}, v{vPW}
        v_cndmask_b32_e64 v{vPM}, v{vPM}, v{vPW}, s[{sMASK}:{sMASK+1}]
        v_lshlrev_b32 v{vL4}, 2, v{vLANE}
        s_mul_i32 s{sT0}, s{sWAVE}, 20
        v_min_u32 v30, 19, v{a}
        v_add_u32 v30, s{sT0}, v30
        v_mul_u32_u24 v30, {PKV_P}, v30
        v_add_u32 v30, {PKV}, v30
        v_lshl_add_u32 v{vKA}, v{b}, 4, v30
        v_add_u32 v30, {80*PKV_P}, v30
        v_mov_b32 v31, {PKV + 160*PKV_P}
        v_add_u32 v26, v31, v{vL4}
        v_cmp_gt_u32 vcc, 20, v{a}
        v_cndmask_b32 v30, v31, v30, vcc
        v_lshl_add_u32 v{vKB}, v{b}, 4, v30
        v_mov_b32 v31, {OOB}
        v_cmp_gt_u32 vcc, 22, v{a}
        v_cndmask_b32 v{vAT0}, v31, v{vL4}, vcc
        v_cmp_gt_u32 vcc, 22, v{vLANE}
        v_cndmask_b32 v{vAT1}, v31, v{vL4}, vcc
        v_mov_b32 v27, 0x3f803f80
        s_lshl_b32 s35, s{sHEAD}, 11
        s_add_u32 s35, s35, {F_KV}
        s_lshl_b32 s{sDEF}, s{sRB}, 7
        s_add_u32 s{sDEF}, s{sDEF}, s35
        v_and_b32 v{vPD}, 15, v{vLANE}
        v_lshl_add_u32 v{vPK}, v{vPD}, 7, s35
        s_lshl_b32 s{sT4}, s{sRG}, 8
        s_add_u32 s{sT4}, s{sT4}, {GG}
        v_lshl_add_u32 v{vOA}, v{a}, 3, s{sT4}
        v_add_u32 v{c}, s{sT0}, v{a}
        v_subrev_u32 v{d}, 20, v{a}
        v_lshlrev_b32 v{d}, 2, v{d}
        s_add_u32 s{sT1}, s{sWAVE}, 80
        v_add_u32 v{d}, s{sT1}, v{d}
        v_cmp_gt_u32 vcc, 20, v{a}
        v_cndmask_b32 v{c}, v{d}, v{c}, vcc
        v_mul_u32_u24 v{c}, {KVL_P}, v{c}
        v_add_u32 v{c}, {KVL}, v{c}
        v_mov_b32 v{d}, {KVL_DUMMY}
        v_cmp_gt_u32 vcc, 22, v{a}
        v_cndmask_b32 v{c}, v{d}, v{c}, vcc
        v_mul_u32_u24 v{e}, 80, v{b}
        v_add_u32 v{e}, v{e}, v{c}
        s_lshl_b32 s{sT0}, s{sT0}, 1
        v_lshl_add_u32 v{c}, v{b}, 3, v{c}
        v_add_u32 v{vW0}, s{sT0}, v{c}
        v_cmp_gt_u32 vcc, 22, v{vLANE}
        v_cndmask_b32 v{vW1}, v{d}, v{vW0}, vcc
        v_mul_u32_u24 v{c}, {KVL_P}, v{a}
        v_lshl_add_u32 v{c}, v{b}, 3, v{c}
        v_add_u32 v{vRD}, {KVL}, v{c}
        v_mov_b32 v16, 0
        v_mov_b32 v17, 0
        v_mov_b32 v18, 0
        v_mov_b32 v19, 0
        """)
        items = []
        tiles = ((22, 160, KA), (22, 224, KA + 16), (24, 288, KA + 32), (22, 320, KA + 48), (22, 384, KA + 64), (22, 0, QA), (22, 64, QA + 16), (22, 128, QA + 32))
        for g in range(20):
            for ks in range(2):
                for t, (vb, col, acc) in enumerate(tiles):
                    sl = g % 6
                    off = (sl % 3)*16384 + ks*8192 + col
                    items.append(dict(g=g, j=g*2 + ks, first_tile=t == 0, chunk=0, acc=acc, init=(g == 0 and ks == 0), tr=t >= 5,
                                      reads=lambda b_, v=vb + sl // 3, off=off: [f"ds_read_b64_tr_b16 {vr(b_,2)}, v{v} offset:{off}",
                                                                                f"ds_read_b64_tr_b16 {vr(b_+2,2)}, v{v} offset:{off+480}"]))
        dma, rd = self.a_pipe()
        def early(xrd):
            t = S(); self.a_setup_src(t)
            return [S([x]) for x in t] + dma(0, "P1", xrd[7])
        zp = S(); chk_zero = self.poll(zp, 216, vZA)
        extra = {16: early, 18: lambda x: [zp]}
        order = (o["npreq"], [("x", 0), ("w", 0), ("w", 1), ("x", 1), ("w", 2), ("w", 3), ("x", 2), ("w", 4), ("w", 5), ("x", 3)])
        c1, _, _, bars = self.stage1(items, 20, 6, w_dma, order, pre0, pre, preb, extra)
        s = S(); s("L_qkv:"); s.extend(c1); self.stamp(s, 1)
        self.a_setup_rd(s)
        s("s_barrier")
        tmp = list(range(208, 216))
        p = S()
        p(f"ds_write_b32 v26, v27")
        for t, (vb, col) in enumerate(((vPW, 0), (vPW, 32), (vPM, 64), (vPW, 80), (vPW, 112))):
            aa = KA + 16*t
            for ks in range(2):
                if t < 3: self.phi(p, list(range(aa + 8*ks, aa + 8*ks + 8)), tmp, sL2E, sEPS, mask=sMASK if t == 2 else None)
                for r in range(4):
                    p(f"v_cvt_pk_bf16_f32 v{aa+8*ks+r}, v{aa+8*ks+2*r}, v{aa+8*ks+2*r+1}")
                pw = p(f"ds_write_b128 v{vb}, {vr(aa + 8*ks, 4)} offset:{col*PKV_P + ks*32}")
                pw.cost = 2
        self.phi(p, list(range(QA, QA + 8)), tmp, sL2E, sEPS)
        p.wait(pw)
        p("s_barrier")
        for i in range(8):
            p(f"ds_read_b128 {vr(KA+8*i,4)}, v{vKA} offset:{i*32}\nds_read_b128 {vr(KA+4+8*i,4)}, v{vKB} offset:{i*32}")
        chk_zero(p)
        km = S()
        for i in range(8):
            km(f"v_mfma_f32_32x32x16_bf16 {vr(KV,16)}, {vr(KA+8*i,4)}, {vr(KA+4+8*i,4)}, {'0' if i == 0 else vr(KV,16)}")
        q = S()
        self.phi(q, list(range(QA + 8, QA + 40)), tmp, sL2E, sEPS)
        km, q = interleave(km, q, 5)
        p.extend(km); p.extend(q[:16])
        ats = []
        for r in range(12):
            t = S(); at = t(f"buffer_atomic_add_f32 v{KV+r}, v{vAT0 if r < 8 else vAT1}, {srd(SWS)}, s{sKVT} offen offset:{r*256}"); ats.append(t)
        q, ats = spread(S(q[16:]), ats, 4)
        p.extend(q)
        for t in ats: p.extend(t)
        self.lstamp(p, "at")
        for r in range(20):
            p(f"v_cvt_pk_bf16_f32 v{PQ+r}, v{QA+2*r}, v{QA+2*r+1}")
        for i in range(5):
            p(f"ds_write_b128 v{e}, v[16:19] offset:{i*16}")
        self.c_setup(p)
        p(f"""
        v_lshrrev_b32 v{c}, 4, v{a}
        s_lshl_b32 s{sT0}, s{sRG}, 1
        v_add_u32 v{c}, s{sT0}, v{c}
        v_mul_u32_u24 v{c}, {47*1024}, v{c}
        v_and_b32 v{d}, 15, v{a}
        v_lshl_add_u32 v{d}, v{b}, 4, v{d}
        v_lshl_add_u32 v246, v{d}, 4, v{c}
        """)
        vOS = 246
        grp = lambda us: [S(sum((list(u) for u in us), []))]
        aq = dma(1, "P0") + dma(2, "Q")
        for cc, slot in ((3, "P1"), (4, "P0"), (5, "Q"), (6, "P1"), (7, "P0")):
            aq += grp(rd(cc - 3)) + dma(cc, slot)
        p, left = spread(p, aq, o["qpace"])
        s.extend(p)
        self.stamp(s, 2)
        fl = S(); fl.wait(at); self.flag(fl, sDEF); self.lstamp(fl, "kf")
        left.insert(min(len(left), o["qflag"]), fl)
        for t in left: s.extend(t)
        self.stamp(s, 5)
        s(self.z2_poll_text())
        for t in rd(5) + rd(6) + rd(7): s.extend(t)
        s.wait_all(vm=False, lg=True)
        f = S()
        f.at(4*o["qo1"])
        gld = f"buffer_load_dwordx2 {vr(GR,2)}, v{vOA}, {srd(SWS)}, 0 offen sc1"
        f(gld)
        chk = self.poll(f, vPD, vPK)
        f.at(4*o["qo2"])
        self.check(f, gld, f"v_cmp_ne_u32 vcc, s{sTAG}, v{GR+1}")
        chk(f)
        f(f"v_lshlrev_b32 v{vPK}, 2, v{vLANE}")
        for r in range(12):
            f(f"buffer_load_dword v{TBL+r}, v{vPK}, {srd(SWS)}, s{sKVT} offen offset:{r*256} sc1")
        f(f"""
        s_lshr_b32 s{sT0}, s{sROLE}, 1
        s_mul_i32 s{sT0}, s{sT0}, 5120
        s_add_u32 s{sT0}, s{sT0}, {AF}
        s_and_b32 s{sT1}, s{sROLE}, 1
        s_mul_i32 s34, s{sT1}, 3072
        s_add_u32 s34, s34, s{sT0}
        s_lshl_b32 s{sT1}, s{sT1}, 3
        s_add_u32 s35, s{sT0}, s{sT1}
        s_add_u32 s35, s35, 2048
        s_lshl_b32 s{sT0}, s{sRG}, 10
        s_lshl_b32 s{sT1}, s{sROLE}, 7
        s_add_u32 s{sT0}, s{sT0}, s{sT1}
        s_add_u32 s{sDEF}, s{sT0}, {F_O}
        s_mov_b32 s{sMASK}, 0
        s_mov_b32 s{sMASK+1}, -1
        """)
        f.at(4*o["qo3"])
        for r in range(6):
            f(f"v_cvt_pk_bf16_f32 v{TBL+r}, v{TBL+2*r}, v{TBL+2*r+1}")
        for g in range(3):
            kw = f(f"ds_write_b64 v{vW1 if g == 2 else vW0}, {vr(TBL+2*g,2)} offset:{g*16}")
        f.wait(kw)
        f("s_barrier")
        plan = {2: range(5), 0: (0, 1, 2), 1: (1, 2, 3, 4)}
        f(f"v_add_u32 v{vW0}, {32*KVL_P}, v{vRD}\nv_add_u32 v{vW1}, {64*KVL_P}, v{vRD}")
        seq = [(T, k) for T in (2, 0, 1) for k in plan[T]]
        def kread(n):
            if n < len(seq):
                T, k = seq[n]
                f(f"ds_read2_b64 {vr(FR+4*(n % 4),4)}, v{(vRD, vW0, vW1)[T]} offset0:{4*k} offset1:{4*k+2}")
        ost = None
        for n in range(4): kread(n)
        f("s_nop 0").cost = 12
        n = 0
        for T in (2, 0, 1):
            for i, k in enumerate(plan[T]):
                f(f"v_mfma_f32_32x32x16_bf16 {vr(NA,16)}, {vr(FR+4*(n % 4),4)}, {vr(PQ+4*k,4)}, {vr(NA,16) if i else '0'}")
                f.glue()
                kread(n + 4); n += 1
                f.glue()
            f("s_nop 0").cost = 12
            if T == 2:
                for h in range(4): f(f"v_add_f32 v{INV+h}, s{sEPS}, v{NA+8+h}")
                for h in range(4): f(f"v_rcp_f32 v{INV+h}, v{INV+h}")
                for h in range(4): f(f"v_mul_f32 v{INV+h}, v{INV+h}, v{GR}")
                f(f"v_cndmask_b32_e64 v{INV+4}, v{INV}, v{INV+1}, s[{sMASK}:{sMASK+1}]\nv_cndmask_b32_e64 v{INV+5}, v{INV+2}, v{INV+3}, s[{sMASK}:{sMASK+1}]")
            order = (0, 2, 1, 3) if T < 2 else (0, 1)
            for k, g in enumerate(order):
                q0 = 8*T + 2*g
                iv = INV + q0 // 5 if q0 // 5 == (q0 + 1) // 5 else INV + 4 + (q0 // 5) // 2
                for r in range(4): f(f"v_mul_f32 v{NA+4*g+r}, v{NA+4*g+r}, v{iv}")
                f(f"v_cvt_pk_bf16_f32 v{NA+2*k}, v{NA+4*g}, v{NA+4*g+1}\nv_cvt_pk_bf16_f32 v{NA+2*k+1}, v{NA+4*g+2}, v{NA+4*g+3}")
            for pc in range(2):
                if T < 2:
                    ost = f(f"buffer_store_dwordx4 {vr(NA+4*pc,4)}, v{vOS}, {srd(SWS)}, s34 offen offset:{T*1024 + pc*512} sc1")
                else:
                    ost = f(f"buffer_store_dwordx2 {vr(NA+2*pc,2)}, v{vOS}, {srd(SWS)}, s35 offen offset:{pc*512} sc1")
        self.lstamp(f, "os")
        f.mark("o_end")
        f("s_nop 0").cost = o["qo4"]
        f.wait(ost); self.flag(f, sDEF)
        self.lstamp(f, "of")
        s.extend(self.cmain(f, 6))
        return s

    def role_misc(self):
        s = S()
        s("L_misc:")
        self.load_tag(s)
        assert all((n*820) >> 16 == n // 80 for n in range(640))
        for j in range(10):
            s(f"""
            v_add_u32 v28, {64*j}, v{vLANE}
            v_mul_u32_u24 v29, 820, v28
            v_lshrrev_b32 v29, 16, v29
            v_mul_u32_u24 v30, 80, v29
            v_sub_u32 v28, v28, v30
            v_lshlrev_b32 v30, 1, v29
            v_xor_b32 v28, v28, v30
            v_mul_u32_u24 v29, 1280, v29
            v_lshl_add_u32 v{12+j}, v28, 4, v29
            """)
        sST = 92
        last = None
        for sl in range(3):
            st = sST + sl
            s(f"""
            s_add_u32 s{st}, s{sRB}, {16*sl}
            s_mul_i32 s{sT0}, s{st}, 13
            s_lshr_b32 s{sT0}, s{sT0}, 6
            s_mul_i32 s{sT1}, s{sT0}, 5
            s_sub_u32 s{sT1}, s{st}, s{sT1}
            s_mul_i32 s{sT0}, s{sT0}, 160
            s_lshl_b32 s{sT2}, s{sT1}, 5
            s_add_u32 s{sT0}, s{sT0}, s{sT2}
            s_cmp_ge_u32 s{sT1}, 3
            s_cselect_b32 s{sT2}, 16, 0
            s_sub_u32 s{sT0}, s{sT0}, s{sT2}
            s_cmp_ge_u32 s{sWAVE}, 2
            s_cselect_b32 s{sT2}, 64, 0
            s_cmp_eq_u32 s{sT1}, 2
            s_cselect_b32 s{sT2}, s{sT2}, 0
            s_add_u32 s{sT0}, s{sT0}, s{sT2}
            s_min_u32 s{sT1}, s{st}, 46
            s_sub_u32 s{sT1}, s{sT1}, 20
            s_lshl_b32 s{sT1}, s{sT1}, 5
            s_mov_b32 s{sT3}, {864*1280}
            s_cmp_lt_u32 s{st}, 20
            s_cselect_b32 s{sT0}, s{sT0}, s{sT1}
            s_cselect_b32 s{SW}, s{P_WO}, s{P_WOUT}
            s_cselect_b32 s{SW+1}, s{P_WO+1}, s{P_WOUT+1}
            s_cselect_b32 s{SW+2}, {640*1280}, s{sT3}
            s_lshl_b32 s{sT1}, s{sWAVE}, 3
            s_add_u32 s{sT0}, s{sT0}, s{sT1}
            s_mul_i32 s{sWO}, s{sT0}, 1280
            s_mul_i32 s{sWB}, s{sWAVE}, 10240
            """)
            for j in range(10):
                s(f"s_add_u32 m0, s{sWB}, {sl*40960 + j*1024}")
                last = s(f"buffer_load_dwordx4 v{12+j}, {srd(SW)}, s{sWO} offen lds")
        assert all((n*13) >> 6 == n // 5 for n in range(20))
        self.late_setup(s)
        self.make_tag(s)
        s(f"""
        v_mov_b32 v32, 0
        v_mov_b32 v33, 0
        v_mov_b32 v34, 0
        v_mov_b32 v35, 0
        v_lshlrev_b32 v36, 4, v{vLANE}
        s_cmp_eq_u32 s{sWAVE}, 0
        s_cselect_b32 s{sT1}, 0, {OOB}
        v_add_u32 v37, s{sT1}, v36
        v_add_u32 v38, s{sT1}, v{vL0}
        s_mul_i32 s{sT0}, s{sRB}, 6144
        s_add_u32 s{sT0}, s{sT0}, {KVT_G}
        s_add_u32 s{sT1}, s{sT0}, 4096
        """)
        for i in range(6):
            z = s(f"buffer_store_dwordx4 v[32:35], v37, {srd(SWS)}, s{sT0 if i < 4 else sT1} offen offset:{(i & 3)*1024} sc1")
        s(f"""
        v_and_b32 v28, 15, v{vLANE}
        v_lshrrev_b32 v29, 4, v{vLANE}
        v_lshlrev_b32 v30, 4, v28
        s_lshl_b32 s{sT2}, s{sRG}, 5
        v_add_u32 v29, s{sT2}, v29
        v_mul_u32_u24 v31, 1280, v29
        v_add_u32 v31, v31, v30
        """)
        GW, XB = 40, 64
        for i in range(5):
            s(f"buffer_load_dwordx4 {vr(GW+4*i,4)}, v30, {srd(SGW)}, 0 offen offset:{i*256}")
        s(f"s_lshl_b32 s{sT2}, s{sRB}, 7\ns_add_u32 s{sT2}, s{sT2}, {F_ZERO}")
        s.wait(z)
        s(f"buffer_store_dword v{vTAG}, v38, {srd(SWS)}, s{sT2} offen sc1")
        for grp in range(8):
            s(f"s_mov_b32 s{sT2}, {grp*4*1280}")
            for i in range(5):
                s(f"buffer_load_dwordx4 {vr(XB+20*grp+4*i,4)}, v31, {srd(SX)}, s{sT2} offen offset:{i*256}")
        ACC = 224
        for grp in range(8):
            s(f"v_mov_b32 v{ACC+grp}, 0")
        for i in range(20):
            for grp in range(8):
                s(f"v_dot2_f32_bf16 v{ACC+grp}, v{XB+20*grp+i}, v{GW+i}, v{ACC+grp}")
        for sh in (8, 4, 2, 1):
            for grp in range(8):
                s(f"v_add_f32_dpp v{ACC+grp}, v{ACC+grp}, v{ACC+grp} row_ror:{sh} row_mask:0xf bank_mask:0xf")
        for grp in range(8): s(f"v_mul_f32 v{ACC+grp}, {f32(-LOG2E)}, v{ACC+grp}")
        for grp in range(8): s(f"v_exp_f32 v{ACC+grp}, v{ACC+grp}")
        for grp in range(8): s(f"v_add_f32 v{ACC+grp}, 1.0, v{ACC+grp}")
        for grp in range(8): s(f"v_rcp_f32 v{64+2*grp}, v{ACC+grp}\nv_mov_b32 v{65+2*grp}, v{vTAG}")
        s(f"""
        v_lshlrev_b32 v29, 3, v29
        v_add_u32 v29, {GG}, v29
        v_mov_b32 v30, {OOB}
        v_cmp_eq_u32 vcc, 0, v28
        v_cndmask_b32 v29, v30, v29, vcc
        """)
        for grp in range(8):
            s(f"buffer_store_dwordx2 {vr(64+2*grp,2)}, v29, {srd(SWS)}, 0 offen offset:{grp*32} sc1")
        s.wait(last)
        s("s_barrier")
        s(f"""
        v_lshrrev_b32 v28, 2, v{vLANE}
        v_and_b32 v29, 7, v28
        v_lshlrev_b32 v29, 5, v29
        v_mul_u32_u24 v28, 1280, v28
        v_and_b32 v30, 3, v{vLANE}
        v_lshl_add_u32 v28, v30, 3, v28
        v_add_u32 v28, v28, v29
        s_mul_i32 s{sT0}, s{sWAVE}, 10
        """)
        for i in range(10):
            s(f"""
            s_add_u32 s{sT1}, s{sT0}, {i}
            s_and_b32 s{sT2}, s{sT1}, 7
            s_lshl_b32 s{sT2}, s{sT2}, 5
            s_lshr_b32 s{sT1}, s{sT1}, 3
            s_lshl_b32 s{sT1}, s{sT1}, 8
            v_xor_b32 v{12+i}, s{sT2}, v28
            v_add_u32 v{12+i}, s{sT1}, v{12+i}
            """)
        rst = None
        for sl in range(3):
            b0 = 96 + 40*sl
            for i in range(10):
                off = 40960 if sl == 1 else 0
                s(f"ds_read_b64_tr_b16 {vr(b0+4*i,2)}, v{12+i} offset:{off}\nds_read_b64_tr_b16 {vr(b0+4*i+2,2)}, v{12+i} offset:{off+20480}")
                if sl == 1: s(f"v_add_u32 v{12+i}, 81920, v{12+i}")
            s(f"""
            s_mul_i32 s{sT1}, s{sST+sl}, 40
            s_add_u32 s{sT1}, s{sT1}, s{sT0}
            s_lshl_b32 s{sT1}, s{sT1}, 10
            s_add_u32 s{sT1}, s{sT1}, {WF}
            s_cmp_lt_u32 s{sST+sl}, 47
            s_cselect_b32 s{sT2}, 0, {OOB}
            v_add_u32 v37, s{sT2}, v36
            """)
            for i in range(10):
                if i in (4, 8): s(f"s_add_u32 s{sT1}, s{sT1}, 4096")
                rst = s(f"buffer_store_dwordx4 {vr(b0+4*i,4)}, v37, {srd(SWS)}, s{sT1} offen offset:{(i & 3)*1024} sc1")
        s.wait(rst)
        s.wait_all(vm=False, lg=True)
        s("s_barrier")
        s(f"""
        s_lshl_b32 s{sDEF}, s{sRB}, 7
        s_add_u32 s{sDEF}, s{sDEF}, {F_REP}
        """)
        self.flag(s, sDEF)
        self.a_setup_src(s); self.a_setup_rd(s)
        dma, rd = self.a_pipe()
        sl = ("P0", "P1", "Q")
        for c in range(8):
            if c >= 3:
                for t in rd(c - 3): s.extend(t)
            for t in dma(c, sl[c % 3]): s.extend(t)
        self.c_setup(s)
        self.stamp(s, 5)
        for t in rd(5) + rd(6): s.extend(t)
        s(self.z2_poll_text())
        for t in rd(7): s.extend(t)
        s.wait_all(vm=False, lg=True)
        s("s_branch L_cz")
        return s

    def late_setup(self, s):
        self.a_setup_rows(s)
        t0, t1, t2, t3, t4 = sFT0 - 0, sFT6, sPM0, sPM6, sOOB6
        a, b, c = 52, 53, 54
        s(f"""
        s_lshr_b32 s{a}, s{sFG}, 1
        s_and_b32 s{b}, s{sFG}, 1
        s_mul_i32 s{a}, s{a}, 14
        s_mul_i32 s{c}, s{b}, 6
        s_add_u32 s{sFT0}, s{a}, s{c}
        s_cmp_eq_u32 s{sFG}, 7
        s_cselect_b32 s{sOOB6}, {OOB}, 0
        s_mul_i32 s{a}, s{sWAVE}, {ZWS}
        s_add_u32 s{a}, s{a}, {Z2F}
        s_mul_i32 s{sB0}, s{sFT0}, {ZTS}
        s_add_u32 s{sB0}, s{sB0}, s{a}
        s_add_u32 s{sB2}, s{sB0}, s{sOOB6}
        s_mov_b32 s{a}, s{sFT0}
        s_lshl_b32 s{b}, s{b}, 1
        s_add_u32 s{b}, s{b}, s{sFT0}
        s_add_u32 s{b}, s{b}, 5
        s_min_u32 s{b}, s{b}, 53
        s_add_u32 s{sPZ}, s{a}, 2
        s_add_u32 s{sPZD}, s{b}, 2
        s_lshr_b32 s{sPZ}, s{sPZ}, 3
        s_lshr_b32 s{sPZD}, s{sPZD}, 3
        s_sub_u32 s{sPZD}, s{sPZD}, s{sPZ}
        s_lshl_b32 s{sPZD}, s{sPZD}, 13
        s_lshl_b32 s{sPZ}, s{sPZ}, 13
        s_lshl_b32 s{c}, s{sWAVE}, 11
        s_add_u32 s{sPZ}, s{sPZ}, s{c}
        s_add_u32 s{sPZ}, s{sPZ}, {F_Z2}
        s_lshr_b32 s{a}, s{a}, 3
        s_lshr_b32 s{b}, s{b}, 3
        s_lshl_b32 s{a}, s{a}, 13
        s_lshl_b32 s{b}, s{b}, 13
        s_lshl_b32 s{sTT}, s{sTB}, 2
        s_add_u32 s{sTT}, s{sTT}, s{sWAVE}
        s_lshr_b32 s{c}, s{sTT}, 1
        s_lshl_b32 s{c}, s{c}, 7
        s_add_u32 s{c}, s{c}, {F_Z1}
        s_add_u32 s{a}, s{a}, s{c}
        s_add_u32 s{b}, s{b}, s{c}
        v_and_b32 v{vG}, 15, v{vLANE}
        v_lshlrev_b32 v{vPA2}, 7, v{vG}
        v_add_u32 v{vPA2}, {F_REP}, v{vPA2}
        v_mov_b32 v{vG+1}, s{a}
        v_cmp_eq_u32 vcc, 16, v{vLANE}
        v_cndmask_b32 v{vPA2}, v{vPA2}, v{vG+1}, vcc
        v_mov_b32 v{vG+1}, s{b}
        v_cmp_eq_u32 vcc, 17, v{vLANE}
        v_cndmask_b32 v{vPA2}, v{vPA2}, v{vG+1}, vcc
        s_lshl_b32 s{a}, s{sTT}, 4
        v_add_u32 v{vG}, s{a}, v{vG}
        v_lshlrev_b32 v{vGA}, 3, v{vG}
        v_add_u32 v{vGA}, {GG}, v{vGA}
        v_lshlrev_b32 v{vG}, 1, v{vG}
        buffer_load_ushort v{vBS}, v{vG}, {srd(SBS)}, 0 offen
        v_lshlrev_b32 v{vG+1}, 4, v{vLANE}
        s_lshr_b32 s{a}, s{sFT0}, 1
        s_lshl_b32 s{a}, s{a}, 10
        v_add_u32 v{vZ1}, s{a}, v{vG+1}
        v_add_u32 v{vZ6}, s{sOOB6}, v{vZ1}
        s_mul_i32 s{sPM0}, s{sTT}, {27*1024}
        s_add_u32 s{sPM0}, s{sPM0}, {Z1F}
        s_mul_i32 s{sPM6}, s{sTT}, {47*1024}
        s_add_u32 s{sPM6}, s{sPM6}, {AF + 20*1024}
        s_mul_i32 s{a}, s{sNG}, 5120
        s_add_u32 s{a}, s{a}, {WF}
        s_cmp_eq_u32 s{sWAVE}, 3
        s_cselect_b32 s{sOOB3}, {OOB}, 0
        s_mul_i32 s{sWFD}, s{sWAVE}, {5*40*1024}
        s_add_u32 s{sWFD}, s{sWFD}, s{a}
        s_mul_i32 s{sWFE}, s{sWAVE}, {7*40*1024}
        s_add_u32 s{sWFE}, s{sWFE}, s{a}
        s_add_u32 s{sWFE}, s{sWFE}, {20*40*1024}
        s_mul_i32 s{sAFD}, s{sWAVE}, {5*1024}
        s_add_u32 s{sAFD}, s{sAFD}, {AF}
        s_lshl_b32 s{sAFE}, s{sWAVE}, 11
        s_add_u32 s{sAFE}, s{sAFE}, {20*1024}
        s_lshl_b32 s{sFO}, s{sTB}, 11
        s_lshl_b32 s{a}, s{sWAVE}, 8
        s_add_u32 s{sFO}, s{sFO}, s{a}
        s_add_u32 s{sFO}, s{sFO}, {F_O}
        s_lshl_b32 s{a}, s{sTB}, 12
        s_add_u32 s{a}, s{a}, {F_U}
        s_lshl_b32 s{b}, s{sFG}, 9
        s_lshl_b32 s{c}, s{sWAVE}, 7
        s_add_u32 s{b}, s{b}, s{c}
        s_add_u32 s{sFUW}, s{a}, s{b}
        s_lshl_b32 s{c}, s{sWAVE}, 10
        s_add_u32 s{sFUR}, s{a}, s{c}
        s_mul_i32 s{c}, s{sRSEL}, {self.o['rote']}
        s_add_u32 s{c}, s{c}, s{sWAVE}
        s_and_b32 s{a}, s{c}, 3
        s_lshl_b32 s{b}, s{sTB}, 2
        s_add_u32 s{a}, s{a}, s{b}
        s_mul_i32 s{sOUT}, s{a}, {16*1280}
        s_mul_i32 s{a}, s{sNG}, 160
        s_add_u32 s{sOUT}, s{sOUT}, s{a}
        """)
        for m in range(4):
            s(f"""
            s_add_u32 s{a}, s{c}, {m}
            s_and_b32 s{a}, s{a}, 3
            s_lshl_b32 s{b}, s{sTB}, 2
            s_add_u32 s{a}, s{a}, s{b}
            s_mul_i32 s{a}, s{a}, {47*1024}
            s_add_u32 s{sAFM[m]}, s{a}, s{sAFD}
            """)

    def c_setup(self, s):
        s(f"""
        v_lshlrev_b32 v{vL16T}, 4, v{vLANE}
        v_add_u32 v{vB0}, s{sB0}, v{vL16T}
        v_add_u32 v{vB0+1}, s{sB2}, v{vL16T}
        v_add_u32 v{vL16X}, s{sOOB3}, v{vL16T}
        v_bfe_u32 v{vP}, v{vLANE}, 4, 1
        v_mul_u32_u24 v{vP}, s{sPZD}, v{vP}
        v_and_b32 v{vPA}, 15, v{vLANE}
        v_lshl_add_u32 v{vPA}, v{vPA}, 7, v{vP}
        v_add_u32 v{vPA}, s{sPZ}, v{vPA}
        """)

    def z2_poll_text(self):
        return f"buffer_load_dword v{vP}, v{vPA}, {srd(SWS)}, 0 offen sc1"

    def wf_load(self, i):
        si, nt = divmod(i, 5)
        t = S()
        if nt in (0, 4) or i == self.o["nwf"]:
            t(f"s_add_u32 s{sT5}, s{sWFD if si < 5 else sWFE}, {(si if si < 5 else si - 5)*40*1024 + (4096 if nt == 4 else 0)}")
        t(f"buffer_load_dwordx4 {wfreg(i)}, v{vL16X if si == 11 else vL16T}, {srd(SWS)}, s{sT5} offen offset:{(nt & 3)*1024} sc1")
        return t

    def red_setup(self, s, per, base, sT5=sT5):
        for m in range(1, 4):
            s(f"s_add_u32 s{sT5}, s{sWAVE}, {m}\ns_and_b32 s{sT5}, s{sT5}, 3\ns_mul_i32 s{sT5}, s{sT5}, {3*per*1024}\ns_add_u32 s{sT5}, s{sT5}, {base + (m-1)*per*1024}\nv_add_u32 v{vRW+m-1}, s{sT5}, v{vL16T}")
        s(f"s_mul_i32 s{sT5}, s{sWAVE}, {3*per*1024}\ns_add_u32 s{sT5}, s{sT5}, {base}\nv_add_u32 v{vRR}, s{sT5}, v{vL16T}")

    def c_acc(self, j, m): return GB + 4*j if m == 0 else XB + 12*(j & 1) + 4*(m - 1)

    def c_send(self, s, j):
        for m in range(1, 4):
            w = s(f"ds_write_b128 v{vRW+m-1}, {vr(self.c_acc(j, m), 4)} offset:{j*1024}")
            w.cost = 6
        return w

    def c_recv(self, s, j, w, gap=0):
        s.wait(w)
        s("s_barrier")
        for m in range(1, 4):
            s(f"ds_read_b128 {vr(self.c_acc(j, m), 4)}, v{vRR} offset:{((m-1)*8 + j)*1024}")
        if gap: s("s_nop 0").cost = gap
        for m in range(1, 4):
            for r in range(4):
                s(f"v_add_f32 v{GB+4*j+r}, v{GB+4*j+r}, v{self.c_acc(j, m)+r}")

    def wf_touch(self, s):
        if not self.o["touch"]: return
        assert all((n*1639) >> 16 == n // 40 for n in range(1900))
        s(f"""
        s_and_b32 s{sT0}, s{sTB}, 7
        s_mul_i32 s{sT0}, s{sT0}, 235
        v_min_u32 v{TU}, 234, v0
        v_add_u32 v{TU}, s{sT0}, v{TU}
        v_mul_u32_u24 v{TU+1}, 1639, v{TU}
        v_lshrrev_b32 v{TU+1}, 16, v{TU+1}
        v_mul_u32_u24 v{TU+1}, {40*1024 - 40*128}, v{TU+1}
        v_lshl_add_u32 v{TU}, v{TU}, 7, v{TU+1}
        s_mul_i32 s{sT0}, s{sNG}, 5120
        s_add_u32 s{sT0}, s{sT0}, {WF}
        buffer_load_dword v{XB+12}, v{TU}, {srd(SWS)}, s{sT0} offen sc1
        """.replace(f"v{TU+1}", f"v{XB+13}").replace(f"v{TU}", f"v{XB+14}"))

    def u_pre(self, s, j):
        z = Z1R + 2*j
        s(f"v_lshlrev_b32 v{TU}, 16, v{z}\nv_and_b32 v{TU+1}, 0xffff0000, v{z}\nv_lshlrev_b32 v{TU+2}, 16, v{z+1}\nv_and_b32 v{TU+3}, 0xffff0000, v{z+1}")
        self.gelu(s, list(range(TU, TU + 4)), list(range(TG, TG + 4)), vC1, vC2)

    def u_fin(self, s, j):
        a = GB + 4*j; z = Z1R + 2*j
        for r in range(4): s(f"v_fma_f32 v{a+r}, v{a+r}, v{vG}, v{vBS}")
        for r in range(4): s(f"v_mul_f32 v{a+r}, v{a+r}, v{TU+r}")
        s(f"v_cvt_pk_bf16_f32 v{z}, v{a}, v{a+1}\nv_cvt_pk_bf16_f32 v{z+1}, v{a+2}, v{a+3}")
        if j & 1: return s(f"buffer_store_dwordx4 {vr(z-2,4)}, v{vZ6 if j == 7 else vZ1}, {srd(SWS)}, s{sPM6} offen offset:{(j >> 1)*1024} sc1")

    def o_poll_text(self):
        return f"buffer_load_dword v{vP}, v{vPA}, {srd(SWS)}, 0 offen sc1"

    def cmain(self, filler, NT):
        o = self.o
        N = 16*NT
        NB = o['NBZ'] if NT == 8 else o['NBQ']
        assert NB <= (38 if NT == 8 else 20)
        s = S()
        self.red_setup(s, 8, RED1)
        s(f"v_mov_b32 v{vC1}, {f32(GC1)}\nv_mov_b32 v{vC2}, {f32(GC2)}")
        self.wf_touch(s)
        self.stamp(s, 6)
        self.check(s, self.z2_poll_text(), f"v_cmp_ne_u32 vcc, s{sTAG}, v{vP}")
        self.stamp(s, 7)
        ld = {}
        def b_pre(t, i):
            j, ks = divmod(i, 16)
            if ks % 4 == 0: t(f"s_xor_b32 s{sWO}, s{sROTB}, {j*ZTS + ks*1024}")
        def b_load(t, i):
            j, ks = divmod(i, 16)
            ld[i] = t(f"buffer_load_dwordx4 {vr(BB + 4*(i % NB), 4)}, v{vB0 + (j >= 6)}, {srd(SWS)}, s{sWO} offen offset:{(ks & 3)*1024} sc1")
            ld[i].cost = 9
        nxt = o["NB0"]
        for i in range(nxt): b_pre(s, i); b_load(s, i)
        m_ = S()
        nw = 0
        for i in range(N):
            j, ks = divmod(i, 16)
            if i % 2 == 0: m_.wait(ld[i + 1])
            if ks == 0: self.lstamp(m_, f"t{j}")
            for m in range(4):
                acc = vr(self.c_acc(j, m), 4)
                m_(f"v_mfma_f32_16x16x32_bf16 {acc}, {vr(BB + 4*(i % NB), 4)}, {ar(ablk(ks >> 1) + 16*(ks & 1) + 4*m, 4)}, {acc if ks else '0'}")
                can = nxt < N and nxt < i + NB
                if can and m == 0: b_pre(m_, nxt)
                if can and (m == 1 or (m == 2 and nxt % 4)):
                    b_load(m_, nxt); nxt += 1
                elif nxt == N and (m == 1 or (m == 2 and o["wf2"])) and nw < min(o["nwf"], 4*(i - N + 16)):
                    if nw == 0: m_.mark("late")
                    t = self.wf_load(nw); t[-1].cost = 9; m_.extend(t); nw += 1
        f = S()
        f.at(24); f("s_barrier")
        for j in range(NT - 1):
            f.at(64*(j + 1) + 3)
            w = self.c_send(f, j)
            f.at(64*(j + 1) + o["cbar"])
            self.c_recv(f, j, w, gap=6)
            f.mark(f"red{j}")
        mm, rest = interleave(m_, f, 2, anchor=("mfma16",))
        assert not rest
        cnt = 0; done = {}
        for x in mm:
            if x.kind == "mfma16": cnt += 1
            if x.kind == "mark" and x.text.startswith("red"):
                j = int(x.text[3:]); done[j] = cnt
                assert cnt <= 64*(j + 2), f"reduction of tile {j} overruns its buffer"
        mm, rest_role = interleave(mm, filler, o["fillc2"], anchor=("mfma16",))
        f = S()
        gld = f"buffer_load_dwordx2 {vr(vG,2)}, v{vGA}, {srd(SWS)}, 0 offen sc1"
        f.at(o["cpoll"])
        c1 = self.poll(f, vP, vPA2); f.glue(); f(gld)
        f.at(o["cpoll"] + o["clat"])
        c1(f); self.check(f, gld, f"v_cmp_ne_u32 vcc, s{sTAG}, v{vG+1}")
        f.mark("rep")
        for p in range(NT // 2):
            f(f"buffer_load_dwordx4 {vr(Z1R+4*p,4)}, v{vZ6 if p == 3 else vZ1}, {srd(SWS)}, s{sPM0} offen offset:{p*1024} sc1").cost = 3
        f(f"""
        v_sub_f32 v{vG}, 1.0, v{vG}
        v_lshlrev_b32 v{vBS}, 16, v{vBS}
        v_mul_f32 v{vBS}, v{vBS}, v{vG}
        v_bfe_u32 v{vP}, v{vLANE}, 1, 1
        v_and_b32 v{vPA}, 1, v{vLANE}
        v_lshlrev_b32 v{vPA}, 7, v{vPA}
        v_lshl_add_u32 v{vPA}, v{vP}, 10, v{vPA}
        v_add_u32 v{vPA}, s{sFO}, v{vPA}
        v_and_b32 v{vPA2}, 7, v{vLANE}
        v_lshl_add_u32 v{vPA2}, v{vPA2}, 7, s{sFUR}
        """)
        f.at(o["cpoll"] + 2*o["clat"])
        for t in range(NT - 1):
            self.u_pre(f, t); f.at(done[t]); self.u_fin(f, t)
        self.u_pre(f, NT - 1)
        mm, rest = interleave(mm, f, o["fillc"] if NT == 8 else o["fillc3"], anchor=("mfma16",))
        marks = [x.text for x in mm if x.kind == "mark"]
        assert marks.index("rep") < marks.index("late")
        if o.get("verbose"): print("tiles", NT, "leftover slots", sum(x.cost for x in rest), sum(x.cost for x in rest_role), file=sys.stderr)
        s.extend(mm)
        self.stamp(s, 8)
        p = S()
        w = self.c_send(p, NT - 1)
        p.extend(rest_role); p.extend(rest)
        self.c_recv(p, NT - 1, w)
        self.u_fin(p, NT - 1)
        po = S(); po(self.o_poll_text())
        p, left = spread(p, [po] + [self.wf_load(i) for i in range(nw, o["nwf"])], o["tpace"], start=-o["tpace"])
        s.extend(p)
        for t in left: s.extend(t)
        return s

    def cmain_plain(self):
        o = self.o
        s = S()
        s("L_cz:")
        v = s.virtual(f"v{vP}")
        s.wait(v); self.flag(s, sDEF)
        s.extend(self.cmain(S(), 8))
        s("s_branch L_tail")
        return s

    def tail(self):
        o = self.o
        s = S()
        s("L_tail:")
        v = s.virtual(f"v{vP} " + " ".join(wfreg(i) for i in range(o["nwf"])))
        self.stamp(s, 9)
        def af_load(si, m, dst):
            t = S()
            k = si if si < 5 else si - 5
            if si == 5: t(f"s_add_u32 s{sAFM[m]}, s{sAFM[m]}, s{sAFE}")
            if k == 4: t(f"s_add_u32 s{sT0}, s{sAFM[m]}, 4096")
            t(f"buffer_load_dwordx4 {dst}, v{vL16X if si == 11 else vL16T}, {srd(SWS)}, s{sAFM[m] if k < 4 else sT0} offen offset:{(k & 3)*1024} sc1")
            return t
        wq = [self.wf_load(i) for i in range(o["nwf"], 60)]
        oq = [af_load(si, m, oreg(5*m + si)) for m in range(4) for si in range(5)]
        seq = [(m, si) for m in (3, 2, 1, 0) for si in range(5, 12)]
        uq = [af_load(si, m, ureg(i)) for i, (m, si) in enumerate(seq)]
        co = S(); self.lstamp(co, "u0"); co.wait(v); self.flag(co, sFUW); self.lstamp(co, "u1")
        self.check(co, self.o_poll_text(), f"v_cmp_ne_u32 vcc, s{sTAG}, v{vP}")
        self.lstamp(co, "oc")
        pu = S(); chk_u = self.poll(pu, vP, vPA2)
        cu = S(); self.lstamp(cu, "uc0"); chk_u(cu); self.lstamp(cu, "uc1")
        n1 = o["tw1"]
        assert o["nwf"] + n1 >= 25
        q = wq[:n1] + [co] + oq + wq[n1:]
        q.insert(len(q) - o["upoll"], pu)
        q += [cu] + uq
        def mm(t, si, m, src):
            for nt in range(5):
                acc = vr(A2 + 20*m + 4*nt, 4)
                t(f"v_mfma_f32_16x16x32_bf16 {acc}, {wfreg(si*5 + nt)}, {src}, {acc if si else '0'}")
        work = [(si, m, oreg(5*m + si), oq[5*m + si]) for m in range(4) for si in range(5)]
        work += [(si, m, ureg(i), uq[i]) for i, (m, si) in enumerate(seq)]
        e = S()
        self.red_setup(e, 5, RED2, sT1)
        e(f"""
        v_and_b32 v{vGA}, 15, v{vLANE}
        v_mul_u32_u24 v{vGA}, 1280, v{vGA}
        v_lshrrev_b32 v{vG}, 4, v{vLANE}
        v_lshl_add_u32 v{vGA}, v{vG}, 3, v{vGA}
        """)
        idx = {id(t): k for k, t in enumerate(q)}
        pos = 0
        for n, (si, m, src, unit) in enumerate(work):
            lim = min(len(q), max(idx[id(unit)] + 1 + o["tahead"], pos + o["drate"]))
            if n < 6: lim = min(lim, idx[id(uq[22 + n])])
            while pos < lim: e.extend(q[pos]); pos += 1
            if n == 20: self.lstamp(e, "e0")
            mm(e, si, m, src)
        assert pos == len(q)
        f = S()
        for k, m in enumerate((3, 2, 1)):
            f.at(100 + 35*(k + 1) + 3)
            for nt in range(5):
                w = f(f"ds_write_b128 v{vRW+m-1}, {vr(A2 + 20*m + 4*nt, 4)} offset:{nt*1024}")
        f.at(240 - o["ebar"])
        f.wait(w); f("s_barrier")
        for nt in range(5):
            for m in range(1, 4):
                f(f"ds_read_b128 {vr(A2 + 20*m + 4*nt, 4)}, v{vRR} offset:{((m-1)*5 + nt)*1024}")
        e, rest = interleave(e, f, o["fille"], anchor=("mfma16",))
        s.extend(e)
        self.stamp(s, 12)
        s.extend(rest)
        for nt in range(5):
            a = A2 + 4*nt
            for r in range(4): s(f"v_add_f32 v{a+20+r}, v{a+20+r}, v{a+40+r}")
            for r in range(4): s(f"v_add_f32 v{a+r}, v{a+r}, v{a+60+r}")
            for r in range(4): s(f"v_add_f32 v{a+r}, v{a+r}, v{a+20+r}")
            s(f"v_cvt_pk_bf16_f32 v{a}, v{a}, v{a+1}\nv_cvt_pk_bf16_f32 v{a+1}, v{a+2}, v{a+3}")
            s(f"buffer_store_dwordx2 {vr(a,2)}, v{vGA}, {srd(SOUT)}, s{sOUT} offen offset:{nt*32}")
        s(f"""
        s_or_b32 s{sT0}, s2, s{sWAVE}
        s_cmp_eq_u32 s{sT0}, 0
        s_cselect_b32 s{sT0}, 0, {OOB}
        s_add_u32 s{sT0}, s{sT0}, {EPOCH}
        v_add_u32 v{vG}, s{sT0}, v{vL0}
        buffer_store_dword v{vTAG}, v{vG}, {srd(SWS)}, 0 offen sc1
        """)
        self.stamp(s, 13)
        self.lflush(s)
        s("L_end:\ns_endpgm")
        return s

    def build(self):
        parts = [self.prologue(), self.role_z(), self.cmain_plain(), self.role_misc(), self.role_qkv(), self.tail()]
        body = "".join(text_of(finish(p)) for p in parts)
        body += "".join(text_of(finish(r)) for r in self.retry)
        head = open("gated_mix__linear_attn_block__mixer_gmlp__prompt.s.ref").read().split("; Override launch")[0]
        return (head + f"; @launch grid=(256,1,1) block=(256,1,1) lds={LDS_BYTES}\n"
                '.amdgcn_target "amdgcn-amd-amdhsa--gfx950"\n.text\n'
                f".globl {KNAME}\n.p2align 8\n.type {KNAME},@function\n{KNAME}:\n" + body +
                "L_code_end:\n  s_endpgm\n"
                '.section .rodata,"a"\n.p2align 6\n'
                f".amdhsa_kernel {KNAME}\n"
                "  .amdhsa_next_free_vgpr 512\n  .amdhsa_next_free_sgpr 102\n  .amdhsa_accum_offset 256\n"
                "  .amdhsa_group_segment_fixed_size 0\n  .amdhsa_kernarg_size 96\n  .amdhsa_user_sgpr_count 2\n"
                "  .amdhsa_user_sgpr_kernarg_segment_ptr 1\n  .amdhsa_system_sgpr_workgroup_id_x 1\n"
                "  .amdhsa_float_denorm_mode_32 3\n"
                ".end_amdhsa_kernel\n")


if __name__ == "__main__":
    out = sys.argv[1]
    opt = {}
    for a in sys.argv[2:]:
        k, v = a.split("=")
        opt[k] = eval(v)
    open(out, "w").write(Gen(**opt).build())
```
